```python
import torch

def _softmax(x, axis=-1):
    return torch.softmax(x, dim=axis)
def _gelu(x):
    return torch.nn.functional.gelu(x, approximate="tanh")
def _silu(x):
    return torch.nn.functional.silu(x)
def _sigmoid(x):
    return torch.sigmoid(x)
def _layernorm(x, axis=-1, eps=1e-5):
    m = x.mean(dim=axis, keepdim=True)
    v = x.var(dim=axis, keepdim=True, unbiased=False)
    return (x - m) / torch.sqrt(v + eps)
def _scatter_add(tgt, idx, src, axis=0):
    return tgt.clone().index_add_(axis, idx, src)
def _segment_sum(src, seg, n):
    out = torch.zeros((n,) + src.shape[1:], dtype=src.dtype)
    return out.index_add_(0, seg, src)
def _pad(x, pw):
    flat = tuple(v for pair in reversed(pw) for v in pair)
    return torch.nn.functional.pad(x, flat)

kernel_name = 'recurrent_scan__sliding_block_cached__swiglu_ffn__decode'

def setup_inputs():

    _w = (lambda a: (lambda t: t.to(torch.bfloat16) if t.is_floating_point() else t)(torch.as_tensor(a)))
    def _A_setup():
        B, Sq, D = 1, 1, 640
        Hq, Hkv, Sk, Dh = 32, 32, 32768, 128
        assert Hq % Hkv == 0, (Hq, Hkv)
        return {
            "x": _w((lambda *s: torch.randn(*s, dtype=torch.bfloat16) * 0.05)(B, Sq, D)),
            "k_cache": _w((lambda *s: torch.randn(*s, dtype=torch.bfloat16) * 1.6)(B, Hkv, Sk, Dh)),
            "v_cache": _w((lambda *s: torch.randn(*s, dtype=torch.bfloat16) * 0.2)(B, Hkv, Sk, Dh)),
            "wq": _w((lambda *s: torch.randn(*s, dtype=torch.bfloat16) * 1.6)(D, Hq * Dh) * (D ** -0.5)),
            "wo": _w((lambda *s: torch.randn(*s, dtype=torch.bfloat16) * 0.2)(Hq * Dh, D) * ((Hq * Dh) ** -0.5)),
        }
    _A_in = _A_setup()

    def _B_setup():
        B, S, D, F = 1, 1, 640, 1728
        return {
            "x": _w((lambda *s: torch.randn(*s, dtype=torch.bfloat16) * 0.05)(B, S, D)),
            "w_gate": _w((lambda *s: torch.randn(*s, dtype=torch.bfloat16) * 0.1)(D, F)),
            "w_up": _w((lambda *s: torch.randn(*s, dtype=torch.bfloat16) * 0.1)(D, F)),
            "w_down": _w((lambda *s: torch.randn(*s, dtype=torch.bfloat16) * 0.1)(F, D)),
        }
    _B_in = _B_setup()

    return {
        "A_x": _A_in["x"],
        "A_k_cache": _A_in["k_cache"],
        "A_v_cache": _A_in["v_cache"],
        "A_wq": _A_in["wq"],
        "A_wo": _A_in["wo"],
        "B_x": _B_in["x"],
        "B_w_gate": _B_in["w_gate"],
        "B_w_up": _B_in["w_up"],
        "B_w_down": _B_in["w_down"],
    }

def reference(A_x, A_k_cache, A_v_cache, A_wq, A_wo, B_x, B_w_gate, B_w_up, B_w_down):
    def _A_ref(x, k_cache, v_cache, wq, wo):
        B, Sq, D = x.shape
        Hq, Dh = 32, 128
        Hkv, Sk = k_cache.shape[1], k_cache.shape[2]
        W = min(4096, max(256, Sk // 4))
        rep = Hq // Hkv
        q = (lambda x, *d: x.permute(*d))((x @ wq).reshape(B, Sq, Hq, Dh), 0, 2, 1, 3)
        k = (lambda x, n, axis: torch.repeat_interleave(x, n, dim=axis))(k_cache[:, :, Sk - W:, :], rep, axis=1)
        v = (lambda x, n, axis: torch.repeat_interleave(x, n, dim=axis))(v_cache[:, :, Sk - W:, :], rep, axis=1)
        scores = torch.einsum("bhqd,bhkd->bhqk", q, k) * (Dh ** -0.5)
        p = _softmax(scores, axis=-1)
        o = torch.einsum("bhqk,bhkd->bhqd", p, v)
        return (lambda x, *d: x.permute(*d))(o, 0, 2, 1, 3).reshape(B, Sq, Hq * Dh) @ wo

    def _B_ref(x, w_gate, w_up, w_down):
        g = _silu(x @ w_gate)
        u = x @ w_up
        return (g * u) @ w_down

    x = A_x
    xn = _layernorm(x, axis=-1)
    s = _A_ref(xn, A_k_cache, A_v_cache, A_wq, A_wo)
    g = _silu(_B_ref(xn, B_w_gate, B_w_up, B_w_down))
    return x + s * g
```

```python
import re

TRANS = ("v_exp_f32", "v_log_f32", "v_rcp_f32", "v_rsq_f32", "v_sqrt_f32", "v_sin_f32", "v_cos_f32")

def _regs(tok):
    tok = tok.strip()
    tok = re.sub(r"^-|^abs\(|\)$|^\|", "", tok).rstrip("|")
    m = re.fullmatch(r"([vsa])(\d+)", tok)
    if m: return [(m.group(1), int(m.group(2)))]
    m = re.fullmatch(r"([vsa])\[(\d+):(\d+)\]", tok)
    if m: return [(m.group(1), k) for k in range(int(m.group(2)), int(m.group(3)) + 1)]
    if tok == "vcc": return [("s", 106), ("s", 107)]
    if tok == "exec": return [("s", 126), ("s", 127)]
    if tok == "m0": return [("s", 124)]
    return []

class Ins:
    def __init__(self, text):
        self.text = text
        t = text.split(";")[0].strip()
        self.label = t.endswith(":")
        self.directive = t.startswith(".")
        parts = t.split(None, 1)
        self.op = parts[0] if parts else ""
        rest = parts[1] if len(parts) > 1 else ""
        ops = []
        depth = 0; cur = ""
        for ch in rest:
            if ch == "[": depth += 1
            if ch == "]": depth -= 1
            if ch == "," and depth == 0: ops.append(cur); cur = ""
            else: cur += ch
        if cur.strip(): ops.append(cur)
        ops = [o.strip() for o in ops]
        self.mods = ""
        if ops:
            l = ops[-1].split(None, 1)
            ops[-1] = l[0]
            self.mods = l[1] if len(l) > 1 else ""
        self.ops = ops
        op = self.op
        self.valu = op.startswith("v_")
        self.mfma = op.startswith("v_mfma")
        self.dot = op.startswith("v_dot")
        self.trans = any(op.startswith(x) for x in TRANS)
        self.dpp = "_dpp" in op
        self.perm = op.startswith("v_permlane")
        self.rdlane = op.startswith("v_readlane") or op.startswith("v_readfirstlane")
        self.vmem = op.startswith(("global_", "buffer_", "flat_"))
        self.ds = op.startswith("ds_")
        self.store = self.vmem and ("store" in op)
        self.w = []; self.r = []
        R = [_regs(o) for o in ops]
        if self.valu:
            if self.perm:
                self.w = R[0] + R[1]; self.r = R[0] + R[1]
            elif op.startswith(("v_add_co", "v_sub_co", "v_addc_co", "v_subb_co", "v_subrev_co")):
                self.w = R[0] + R[1]; self.r = sum(R[2:], [])
            else:
                self.w = R[0]; self.r = sum(R[1:], [])
                if op.startswith(("v_fmac", "v_dot2c", "v_pk_fmac")) or self.dpp: self.r = self.r + R[0]
                if op.startswith("v_cndmask") and len(ops) == 3: self.r += _regs("vcc")
        elif self.vmem or self.ds:
            if self.store or op.startswith(("ds_write", "ds_add_u32", "ds_add_f32", "ds_or_b32")) or (("atomic" in op) and "sc0" not in self.mods) or " lds" in (" " + self.mods) or "load_lds" in op:
                self.r = sum(R, [])
            else:
                self.w = R[0]; self.r = sum(R[1:], [])
        elif op.startswith("s_") and ops:
            if op.startswith(("s_cmp", "s_cbranch", "s_branch", "s_waitcnt", "s_nop", "s_sleep", "s_setprio", "s_bitcmp", "s_setpc")):
                self.r = sum(R, [])
            else:
                self.w = R[0]; self.r = sum(R[1:], [])
        self.states = 1
        if op == "s_nop": self.states = int(ops[0], 0) + 1
        if self.label or self.directive or not op: self.states = 0

def need(prod, cons):
    n = 0
    pw = set(prod.w); cr = set(cons.r); cw = set(cons.w)
    pwv = {x for x in pw if x[0] in "va"}; pws = {x for x in pw if x[0] == "s"}
    if prod.mfma:
        if pwv & (cr | cw):
            passes = 8 if "32x32" in prod.op else 4
            full = {4: 8, 8: 12}[passes]
            if cons.mfma:
                A = set(_regs(cons.ops[1])) | set(_regs(cons.ops[2])); C = set(_regs(cons.ops[3]))
                if pwv & A: n = max(n, full)
                elif pwv & C:
                    n = max(n, 0 if (C == pwv and cons.op == prod.op) else full - 2)
                elif pwv & cw: n = max(n, full)
            elif cons.valu or cons.vmem or cons.ds: n = max(n, full)
        C = set(_regs(prod.ops[3]))
        if cons.valu and not cons.mfma and (C & cw): n = max(n, 7 if "32x32" in prod.op else 3)
    elif prod.valu:
        if pwv & cr:
            if cons.dpp: n = max(n, 2)
            if cons.perm: n = max(n, 2)
            if cons.rdlane: n = max(n, 1)
            if cons.mfma: n = max(n, 2)
            if prod.trans and cons.valu and not cons.trans: n = max(n, 1)
            if prod.trans and (cons.vmem or cons.ds): n = max(n, 1)
        if prod.dot and (pwv & (cr | cw)):
            same = cons.op.replace("_e32", "") == prod.op.replace("_e32", "")
            if same:
                ab = set(_regs(cons.ops[1])) | set(_regs(cons.ops[2]))
                if pwv & ab: n = max(n, 3)
            else:
                n = max(n, 3)
        if pws & cr:
            if cons.valu: n = max(n, 4 if (cons.rdlane or cons.op.startswith("v_writelane")) else 2)
            if cons.vmem: n = max(n, 5)
            if cons.op.startswith("s_") and not cons.op.startswith("s_cbranch"): n = max(n, 1)
    if prod.store and ("x4" in prod.op or "x3" in prod.op) and cons.valu:
        data = set(sum([_regs(o) for o in prod.ops], []))
        if {x for x in data if x[0] == "v"} & cw: n = max(n, 2)
    if prod.op.startswith("s_") and ("s", 124) in pw and (("lds" in cons.mods and cons.vmem) or "load_lds" in cons.op): n = max(n, 1)
    return n

class Asm:
    def __init__(self):
        self.L = []
    def __call__(self, text):
        for line in text.split("\n"):
            line = line.strip()
            if line: self.L.append(Ins(line))
    def label(self, name): self.L.append(Ins(name + ":"))
    def finish(self):
        out = []
        for ins in self.L:
            if ins.states and ins.op:
                dist = 0; pad = 0
                for p in reversed(out[-24:]):
                    if dist >= 12: break
                    if p.op in ("s_branch", "s_endpgm", "s_setpc_b64"): break
                    if p.states:
                        nd = need(p, ins)
                        if nd > dist: pad = max(pad, nd - dist)
                    dist += p.states
                if pad:
                    out.append(Ins(f"s_nop {pad-1}"))
            out.append(ins)
        return "\n".join(("" if (i.label or i.directive) else "    ") + i.text for i in out) + "\n"
```

```python
import sys, os
sys.path.insert(0, os.path.dirname(os.path.abspath(__file__)))
from asmlib import Asm
import struct
KN = "recurrent_scan__sliding_block_cached__swiglu_ffn__decode_kernel"
def f2u(x): return struct.unpack("<I", struct.pack("<f", x))[0]
def H(x): return "0x%08x" % (x & 0xffffffff)

SQ, SF, SO, ML, SY = 0x0, 0x20000, 0x40000, 0x60000, 0x80000
L_MX, L_LS, F_CLR, F_GRP, F_Q, F_P, TK_O, TK_Y, F_O = 0x0, 0x40, 0x80, 0x84, 0x88, 0x90, 0xa0, 0xa4, 0xa8
L_Q, L_P, L_O, L_Y = 0x100, 0x200, 0x1000, 0x2000
LDS_BYTES = 0x3000
LOG2E = 1.4426950408889634
SPIN = 1 << 17
SC = "sc1"

def gen(stamps=False, hmul=37):
    A = Asm()
    nst = [0]
    uid = [0]
    def lab(p):
        uid[0] += 1
        return f"L_{p}{uid[0]}"
    def stamp(k):
        if stamps: A(f"s_memrealtime s[{64+2*k}:{65+2*k}]")
    def D(j): return f"v[{8+4*j}:{11+4*j}]"
    VM, P0, P1, ACC, A0, A1 = 136, 140, 141, 144, 148, 152
    def bf16r(dst, src):
        A(f"v_cvt_pk_bf16_f32 v{dst}, v{src}, v{src}")
        A(f"v_and_b32 v{dst}, 0xffff0000, v{dst}")
    def lds_wait(off, extra="", sleep=1, vt=156):
        l = lab("lw"); d = lab("ld")
        A.label(l)
        A(f"ds_read_b32 v{vt}, v2 offset:{off}")
        if extra: A(extra)
        A("s_waitcnt lgkmcnt(0)")
        A(f"v_cmp_eq_u32 vcc, 0, v{vt}")
        A(f"s_cbranch_vccz {d}")
        A(f"s_sleep {sleep}")
        A("s_sub_u32 s38, s38, 1")
        A(f"s_cbranch_scc0 {l}"); A("s_branch L_end")
        A.label(d)
    def lds_set(off):
        A("v_mov_b32 v157, 1")
        A(f"ds_write_b32 v2, v157 offset:{off}")
    def masks():
        A("v_and_b32 v156, 1, v3"); A("v_lshlrev_b32 v156, 4, v156"); A("v_mov_b32 v157, 0xffff")
        A("v_lshlrev_b32 v157, v156, v157"); A("v_lshrrev_b32 v156, 1, v3")
        for u in range(4): A(f"v_cmp_eq_u32 s[{48+2*u}:{49+2*u}], {u}, v156")
        for u in range(4): A(f"v_cndmask_b32 v{VM+u}, 0, v157, s[{48+2*u}:{49+2*u}]")
    def abuild(dst, preg, k):
        for u in range(4):
            A(f"v_and_b32_dpp v{dst+u}, v{preg}, v{VM+u} row_newbcast:{k} row_mask:0xf bank_mask:0xf")
    def gemv(n, src, waits=None):
        abuild(A0, *src(0))
        for j in range(n):
            cur = A0 if j % 2 == 0 else A1
            nxt = A1 if j % 2 == 0 else A0
            if j + 1 < n: abuild(nxt, *src(j + 1))
            if waits is not None and waits(j) is not None: A(f"s_waitcnt vmcnt({waits(j)})")
            c = "0" if j == 0 else f"v[{ACC}:{ACC+3}]"
            A(f"v_mfma_f32_16x16x32_bf16 v[{ACC}:{ACC+3}], v[{cur}:{cur+3}], {D(j)}, {c}")
    def rowsum(v, op="v_add_f32"):
        for k in (8, 4, 2, 1):
            A(f"{op}_dpp v{v}, v{v}, v{v} row_ror:{k} row_mask:0xf bank_mask:0xf")
    def wavesum_to_s(v, s):
        rowsum(v)
        A(f"v_add_f32_dpp v{v}, v{v}, v{v} row_bcast:15 row_mask:0xa bank_mask:0xf")
        A(f"v_add_f32_dpp v{v}, v{v}, v{v} row_bcast:31 row_mask:0xc bank_mask:0xf")
        A(f"v_readlane_b32 s{s}, v{v}, 63")
    def combine(lbase, tk, endlab):
        A("s_lshl_b32 s46, s31, 10")
        A("v_lshlrev_b32 v4, 4, v0")
        A("v_add_u32 v5, s46, v4")
        A("v_mov_b32 v6, 1")
        A(f"ds_write_b128 v5, v[{ACC}:{ACC+3}] offset:{lbase}")
        A("s_mov_b64 exec, 1")
        A(f"ds_add_rtn_u32 v6, v2, v6 offset:{tk}")
        A("s_mov_b64 exec, -1")
        A(f"ds_read_b128 v[156:159], v4 offset:{lbase}")
        A(f"ds_read_b128 v[160:163], v4 offset:{lbase+1024}")
        A(f"ds_read_b128 v[164:167], v4 offset:{lbase+2048}")
        A(f"ds_read_b128 v[148:151], v4 offset:{lbase+3072}")
        A("s_waitcnt lgkmcnt(0)")
        A("v_readfirstlane_b32 s46, v6")
        A("v_pk_add_f32 v[156:157], v[156:157], v[160:161]")
        A("v_pk_add_f32 v[158:159], v[158:159], v[162:163]")
        A("v_pk_add_f32 v[164:165], v[164:165], v[148:149]")
        A("v_pk_add_f32 v[166:167], v[166:167], v[150:151]")
        A("s_cmp_eq_u32 s46, 3")
        A(f"s_cbranch_scc0 {endlab}")
        A("v_pk_add_f32 v[156:157], v[156:157], v[164:165]")
        A("v_pk_add_f32 v[158:159], v[158:159], v[166:167]")
    def silu(dst, z, t):
        A(f"v_mul_f32 v{t}, {H(f2u(-LOG2E))}, v{z}")
        A(f"v_exp_f32 v{t}, v{t}")
        A(f"v_add_f32 v{t}, 1.0, v{t}")
        A(f"v_rcp_f32 v{t}, v{t}")
        A(f"v_mul_f32 v{dst}, v{z}, v{t}")

    hdr = [f"; @launch grid=(256,1,1) block=(704,1,1) lds={LDS_BYTES}",
           '.amdgcn_target "amdgcn-amd-amdhsa--gfx950"', ".text", f".globl {KN}", ".p2align 8", f".type {KN},@function"]
    A.label(KN)
    stamp(0)
    A("s_load_dwordx16 s[4:19], s[0:1], 0")
    A("s_load_dwordx8 s[20:27], s[0:1], 64")
    A("s_cmp_ge_u32 s2, 256")
    A("s_cbranch_scc1 L_exit")
    A("v_lshrrev_b32 v1, 6, v0")
    A("v_and_b32 v0, 63, v0")
    A("v_readfirstlane_b32 s3, v1")
    A("v_mov_b32 v2, 0")
    A("v_and_b32 v3, 15, v0")
    A("s_and_b32 s28, s2, 31")
    A("s_lshr_b32 s29, s2, 5")
    A(f"s_mov_b32 s38, {SPIN}")
    A("s_lshl_b32 s30, s28, 3")
    A("s_add_u32 s30, s30, s29")
    A("s_cmp_eq_u32 s3, 2")
    A("s_cbranch_scc0 L_noinit")
    A("v_subrev_u32 v4, 32, v0")
    A("v_ashrrev_i32 v4, 31, v4")
    A("v_lshlrev_b32 v5, 2, v0")
    A("ds_write_b32 v5, v4")
    A("s_waitcnt lgkmcnt(0)")
    A.label("L_noinit")
    A("s_barrier")
    A("s_cmp_lt_u32 s3, 2")
    A("s_cbranch_scc1 L_ab")
    A("s_cmp_eq_u32 s3, 2")
    A("s_cbranch_scc1 L_c")
    A("s_sub_u32 s39, s3, 3")
    A("s_and_b32 s31, s39, 3")
    A("s_lshl_b32 s36, s28, 23")
    A("s_lshl_b32 s37, s29, 17")
    A("s_add_u32 s36, s36, s37")
    A("s_add_u32 s36, s36, 0x700000")
    A(f"s_mul_i32 s37, s2, {hmul}")
    A("s_and_b32 s37, s37, 127")
    A("s_xor_b32 s37, s37, s31")
    A("s_lshl_b32 s37, s37, 10")
    A("s_add_u32 s36, s36, s37")
    A("v_lshlrev_b32 v1, 4, v0")
    A("s_mov_b32 s34, 0x10000000")
    A("s_mov_b32 s35, 0x20000")
    A("s_setprio 1")
    A("s_cmp_lt_u32 s39, 4")
    A("s_cbranch_scc0 L_kv1")
    A("s_setprio 2")
    A.label("L_kv1")
    A("s_waitcnt lgkmcnt(0)")
    A("s_cselect_b32 s32, s6, s8")
    A("s_cselect_b32 s33, s7, s9")
    stamp(1)
    for j in range(32):
        if j == 0:
            A(f"buffer_load_dwordx4 {D(j)}, v1, s[32:35], s36 offen nt")
        else:
            A(f"s_xor_b32 s37, s36, {j << 12}")
            A(f"buffer_load_dwordx4 {D(j)}, v1, s[32:35], s37 offen nt")
    stamp(2)
    masks()
    A("s_cmp_lt_u32 s39, 4")
    A("s_cbranch_scc1 L_k")
    A("s_lshl_b32 s46, s31, 9")
    A("v_lshl_add_u32 v4, v0, 3, s46")
    A("s_lshl_b32 s46, s31, 2")
    A("v_mov_b32 v5, s46")
    l = lab("vp"); d = lab("vd")
    A.label(l)
    A(f"ds_read_b32 v156, v5 offset:{F_P}")
    A(f"ds_read_b64 v[{P0}:{P1}], v4 offset:{L_P}")
    A("s_waitcnt lgkmcnt(0)")
    A("v_cmp_eq_u32 vcc, 0, v156")
    A(f"s_cbranch_vccz {d}")
    A("s_sleep 1")
    A("s_sub_u32 s38, s38, 1")
    A(f"s_cbranch_scc0 {l}"); A("s_branch L_end")
    A.label(d)
    stamp(3)
    A("s_setprio 3")
    gemv(32, lambda j: (P0 + j // 16, j % 16), waits=lambda j: 31 - j)
    stamp(4)
    A("s_lshl_b32 s47, s30, 9")
    A(f"s_add_u32 s47, s47, {SO}")
    A("v_lshl_add_u32 v7, v0, 4, s47")
    combine(L_O, TK_O, "L_end")
    A("s_mov_b32 exec_hi, 0")
    A(f"global_store_dwordx4 v7, v[156:159], s[26:27] {SC}")
    A("s_mov_b64 exec, -1")
    lds_set(F_O)
    stamp(5)
    A("s_branch L_end")
    A.label("L_k")
    A("v_lshlrev_b32 v4, 4, v3")
    A("s_mov_b32 s40, 0xcccccccc"); A("s_mov_b32 s41, 0xcccccccc")
    A("s_mov_b32 s42, 0xaaaaaaaa"); A("s_mov_b32 s43, 0xaaaaaaaa")
    lds_wait(F_Q, extra=f"ds_read_b128 v[160:163], v4 offset:{L_Q}", sleep=2)
    stamp(3)
    A("s_setprio 3")
    def bitrev4(x): return ((x & 1) << 3) | ((x & 2) << 1) | ((x & 4) >> 1) | ((x & 8) >> 3)
    for half in range(2):
        A(f"s_waitcnt vmcnt({16 if half == 0 else 0})")
        for j4 in range(4):
            js = [16 * half + 4 * j4 + t for t in range(4)]
            for k in range(4):
                for j in js:
                    b = 8 + 4 * j
                    if k == 0: A(f"v_dot2_f32_bf16 v{b}, v{b}, v160, 0")
                    else: A(f"v_dot2c_f32_bf16 v{b}, v{b+k}, v{160+k}")
        a = [8 + 4 * (16 * half + bitrev4(m)) for m in range(16)]
        for k in range(8): A(f"v_add_f32_dpp v{a[2*k]}, v{a[2*k]}, v{a[2*k]} row_ror:8 row_mask:0xf bank_mask:0x3")
        for k in range(8): A(f"v_add_f32_dpp v{a[2*k]}, v{a[2*k+1]}, v{a[2*k+1]} row_ror:8 row_mask:0xf bank_mask:0xc")
        b = [a[2*k] for k in range(8)]
        for k in range(4): A(f"v_add_f32_dpp v{b[2*k]}, v{b[2*k]}, v{b[2*k]} row_half_mirror row_mask:0xf bank_mask:0x5")
        for k in range(4): A(f"v_add_f32_dpp v{b[2*k]}, v{b[2*k+1]}, v{b[2*k+1]} row_half_mirror row_mask:0xf bank_mask:0xa")
        c = [b[2*k] for k in range(4)]
        for k in range(4): A(f"v_add_f32_dpp v{c[k]}, v{c[k]}, v{c[k]} quad_perm:[2,3,0,1] row_mask:0xf bank_mask:0xf")
        for k in range(2): A(f"v_cndmask_b32 v{c[2*k]}, v{c[2*k]}, v{c[2*k+1]}, s[40:41]")
        dd = [c[0], c[2]]
        for k in range(2): A(f"v_add_f32_dpp v{dd[k]}, v{dd[k]}, v{dd[k]} quad_perm:[1,0,3,2] row_mask:0xf bank_mask:0xf")
        A(f"v_cndmask_b32 v{164+half}, v{dd[0]}, v{dd[1]}, s[42:43]")
    A("v_cvt_pk_bf16_f32 v166, v164, v165")
    A("v_lshlrev_b32 v164, 16, v166"); A("v_and_b32 v165, 0xffff0000, v166")
    A(f"v_mul_f32 v164, {H(f2u(128 ** -0.5))}, v164"); A(f"v_mul_f32 v165, {H(f2u(128 ** -0.5))}, v165")
    A("v_cvt_pk_bf16_f32 v166, v164, v165")
    A("v_lshlrev_b32 v164, 16, v166"); A("v_and_b32 v165, 0xffff0000, v166")
    A(f"v_mul_f32 v164, {H(f2u(LOG2E))}, v164"); A(f"v_mul_f32 v165, {H(f2u(LOG2E))}, v165")
    A("v_max_f32 v166, v164, v165")
    rowsum(166, "v_max_f32")
    A("v_lshrrev_b32 v5, 4, v0"); A("s_lshl_b32 s46, s31, 4"); A("v_lshl_add_u32 v5, v5, 2, s46")
    A("v_lshlrev_b32 v6, 2, v3")
    A(f"ds_write_b32 v5, v166 offset:{L_MX}")
    l = lab("mx"); d = lab("md")
    A.label(l)
    A(f"ds_read_b32 v166, v6 offset:{L_MX}")
    A("s_waitcnt lgkmcnt(0)")
    A("v_cmp_eq_u32 vcc, -1, v166")
    A(f"s_cbranch_vccz {d}")
    A("s_sub_u32 s38, s38, 1")
    A(f"s_cbranch_scc0 {l}"); A("s_branch L_end")
    A.label(d)
    rowsum(166, "v_max_f32")
    A("v_sub_f32 v164, v164, v166"); A("v_sub_f32 v165, v165, v166")
    A("v_exp_f32 v164, v164"); A("v_exp_f32 v165, v165")
    A("s_lshl_b32 s46, s31, 9")
    A("v_lshl_add_u32 v4, v0, 3, s46")
    A(f"v_cvt_pk_bf16_f32 v{P0}, v164, v164"); A(f"v_cvt_pk_bf16_f32 v{P1}, v165, v165")
    A("v_add_f32 v167, v164, v165")
    A("s_lshl_b32 s46, s31, 2")
    A("v_mov_b32 v7, s46"); A("v_mov_b32 v157, 1")
    A(f"ds_write_b64 v4, v[{P0}:{P1}] offset:{L_P}")
    A(f"ds_write_b32 v7, v157 offset:{F_P}")
    rowsum(167)
    A(f"ds_write_b32 v5, v167 offset:{L_LS}")
    stamp(4)
    A("s_cmp_eq_u32 s31, 0")
    A("s_cbranch_scc0 L_k2")
    l = lab("ls"); d = lab("le")
    A.label(l)
    A(f"ds_read_b32 v167, v6 offset:{L_LS}")
    A("s_waitcnt lgkmcnt(0)")
    A("v_cmp_eq_u32 vcc, -1, v167")
    A(f"s_cbranch_vccz {d}")
    A("s_sub_u32 s38, s38, 1")
    A(f"s_cbranch_scc0 {l}"); A("s_branch L_end")
    A.label(d)
    rowsum(167)
    A("s_lshl_b32 s46, s30, 4"); A(f"s_add_u32 s46, s46, {ML}"); A("v_mov_b32 v7, s46")
    A("s_mov_b64 exec, 1")
    A(f"global_store_dwordx2 v7, v[166:167], s[26:27] {SC}")
    A("s_mov_b64 exec, -1")
    A("s_waitcnt vmcnt(0)")
    A.label("L_k2")
    A("v_and_b32 v4, 7, v0")
    A("s_lshl_b32 s46, s28, 7"); A(f"s_add_u32 s46, s46, {ML}")
    A("v_lshl_add_u32 v5, v4, 4, s46")
    l = lab("ml"); d = lab("me")
    A.label(l)
    A(f"global_load_dwordx2 v[164:165], v5, s[26:27] {SC}")
    A("s_waitcnt vmcnt(0)")
    A("v_max_u32 v166, v164, v165")
    A("v_cmp_eq_u32 vcc, -1, v166")
    A(f"s_cbranch_vccz {d}")
    A("s_sleep 8")
    A("s_sub_u32 s38, s38, 1")
    A(f"s_cbranch_scc0 {l}"); A("s_branch L_end")
    A.label(d)
    stamp(5)
    def red8(v, op):
        A(f"{op}_dpp v{v}, v{v}, v{v} quad_perm:[1,0,3,2] row_mask:0xf bank_mask:0xf")
        A(f"{op}_dpp v{v}, v{v}, v{v} quad_perm:[2,3,0,1] row_mask:0xf bank_mask:0xf")
        A(f"{op}_dpp v{v}, v{v}, v{v} row_half_mirror row_mask:0xf bank_mask:0xf")
    A("v_mov_b32 v166, v164")
    red8(166, "v_max_f32")
    A("v_sub_f32 v164, v164, v166")
    A("v_exp_f32 v164, v164")
    A("v_mul_f32 v165, v165, v164")
    red8(165, "v_add_f32")
    A("v_rcp_f32 v165, v165")
    A("v_mul_f32 v142, v164, v165")
    A("s_mov_b32 s32, s12"); A("s_mov_b32 s33, s13"); A(f"s_mov_b32 s34, {4096*640*2}")
    A("s_lshl_b32 s46, s28, 7"); A("s_and_b32 s47, s31, 1"); A("s_lshl_b32 s47, s47, 6"); A("s_add_u32 s46, s46, s47")
    A("s_lshr_b32 s47, s31, 1"); A("s_lshl_b32 s47, s47, 2"); A("s_add_u32 s46, s46, s47")
    A("s_mul_i32 s36, s46, 1280"); A("s_mul_i32 s47, s29, 160"); A("s_add_u32 s36, s36, s47")
    A("s_add_u32 s37, s36, 10240")
    A("v_lshrrev_b32 v5, 4, v0"); A("v_mul_u32_u24 v5, 20480, v5"); A("v_lshl_add_u32 v5, v3, 4, v5")
    A("s_mov_b32 s44, 0x03ff03ff"); A("s_mov_b32 s45, 0x03ff03ff")
    A("s_setprio 0")
    A("s_mov_b64 exec, s[44:45]")
    for k in range(8):
        b1, b2, b3 = k & 1, (k >> 1) & 1, k >> 2
        A(f"buffer_load_dwordx4 {D(k)}, v5, s[32:35], s{37 if b3 else 36} offen offset:{(2*b1+b2)*1280} nt")
    A("s_mov_b64 exec, -1")
    A("s_setprio 3")
    stamp(6)
    A("s_lshl_b32 s46, s28, 12"); A("s_lshl_b32 s47, s31, 7"); A("s_add_u32 s46, s46, s47"); A(f"s_add_u32 s46, s46, {SO}")
    A("v_lshrrev_b32 v5, 3, v0"); A("v_lshlrev_b32 v5, 4, v5"); A("v_lshl_add_u32 v5, v4, 9, v5"); A("v_add_u32 v5, s46, v5")
    A("s_mul_i32 s46, s29, 20480"); A("s_lshl_b32 s47, s28, 4"); A("s_add_u32 s46, s46, s47"); A(f"s_add_u32 s46, s46, {SY}")
    A("v_lshrrev_b32 v7, 4, v0"); A("v_lshl_add_u32 v7, v3, 1, v7"); A("v_lshl_add_u32 v7, v7, 10, s46")
    lds_wait(F_O, sleep=1)
    stamp(7)
    l = lab("so"); d = lab("se")
    A.label(l)
    A(f"global_load_dwordx4 v[160:163], v5, s[26:27] {SC}")
    A("s_waitcnt vmcnt(0)")
    A("v_max3_u32 v164, v160, v161, v162")
    A("v_max_u32 v164, v164, v163")
    A("v_cmp_eq_u32 vcc, -1, v164")
    A(f"s_cbranch_vccz {d}")
    A("s_sub_u32 s38, s38, 1")
    A(f"s_cbranch_scc0 {l}"); A("s_branch L_end")
    A.label(d)
    stamp(8)
    for t in range(4): A(f"v_mul_f32 v{160+t}, v142, v{160+t}")
    A("v_add_f32_dpp v160, v160, v160 row_half_mirror row_mask:0xf bank_mask:0x5")
    A("v_add_f32_dpp v162, v162, v162 row_half_mirror row_mask:0xf bank_mask:0x5")
    A("v_add_f32_dpp v160, v161, v161 row_half_mirror row_mask:0xf bank_mask:0xa")
    A("v_add_f32_dpp v162, v163, v163 row_half_mirror row_mask:0xf bank_mask:0xa")
    A("v_add_f32_dpp v160, v160, v160 quad_perm:[2,3,0,1] row_mask:0xf bank_mask:0xf")
    A("v_add_f32_dpp v162, v162, v162 quad_perm:[2,3,0,1] row_mask:0xf bank_mask:0xf")
    A("v_cndmask_b32 v160, v160, v162, s[40:41]")
    A("v_add_f32_dpp v160, v160, v160 quad_perm:[1,0,3,2] row_mask:0xf bank_mask:0xf")
    A(f"v_cvt_pk_bf16_f32 v{P0}, v160, v160")
    gemv(8, lambda j: (P0, 2 * j))
    combine(L_Y, TK_Y, "L_end")
    A("s_mov_b64 exec, 0x03ff03ff")
    A(f"global_store_dwordx4 v7, v[156:159], s[26:27] {SC}")
    A("s_mov_b64 exec, -1")
    stamp(9)
    A("s_branch L_end")
    A.label("L_ab")
    A("s_setprio 3")
    A("s_cmp_eq_u32 s3, 1"); A("s_cselect_b32 s46, 27, 64"); A("s_cmp_ge_u32 s28, s46"); A("s_cbranch_scc1 L_end")
    A("v_lshrrev_b32 v1, 4, v0")
    A("v_mul_u32_u24 v4, 20, v0")
    A("v_mul_u32_u24 v5, 20, v1")
    A("s_mul_i32 s46, s29, 80")
    A("v_add_u32 v5, s46, v5")
    A("v_add_lshl_u32 v6, v5, v3, 1")
    A("v_and_b32 v7, 3, v3"); A("v_add_lshl_u32 v7, v5, v7, 1")
    A("s_waitcnt lgkmcnt(0)")
    stamp(1)
    A("global_load_dwordx4 v[88:91], v4, s[4:5]")
    A("global_load_dword v92, v4, s[4:5] offset:16")
    A("global_load_ushort v93, v6, s[4:5]")
    A("global_load_ushort v94, v7, s[4:5] offset:32")
    A("s_add_u32 s48, s10, 128"); A("s_addc_u32 s49, s11, 0")
    A("s_cmp_eq_u32 s3, 0")
    A("s_cselect_b32 s50, s10, s16"); A("s_cselect_b32 s51, s11, s17")
    A("s_cselect_b32 s48, s48, s18"); A("s_cselect_b32 s49, s49, s19")
    A("s_movk_i32 s44, 3456"); A("s_cselect_b32 s44, 8192, s44"); A("s_mov_b32 s45, 0")
    A("s_cselect_b32 s46, 8, 7"); A("s_lshl_b32 s46, s28, s46")
    A("v_mul_lo_u32 v6, v5, s44")
    A("v_and_b32 v7, 7, v3"); A("v_lshl_add_u32 v6, v7, 4, v6"); A("v_add_u32 v6, s46, v6"); A("v_mov_b32 v7, 0")
    A("v_cmp_gt_u32 vcc, 8, v3")
    A("v_mov_b32 v4, s48"); A("v_mov_b32 v5, s49"); A("v_mov_b32 v95, s50"); A("v_mov_b32 v96, s51")
    A("v_cndmask_b32 v4, v4, v95, vcc"); A("v_cndmask_b32 v5, v5, v96, vcc")
    A("v_lshl_add_u64 v[4:5], v[6:7], 0, v[4:5]")
    for n in range(20):
        A(f"global_load_dwordx4 {D(n)}, v[4:5], off nt")
        if n < 19: A("v_lshl_add_u64 v[4:5], v[4:5], 0, s[44:45]")
    stamp(2)
    masks()
    A("s_waitcnt vmcnt(20)")
    for k in range(5):
        A(f"v_lshlrev_b32 v{100+2*k}, 16, v{88+k}"); A(f"v_and_b32 v{101+2*k}, 0xffff0000, v{88+k}")
    A("v_add_f32 v110, v100, v101")
    for k in range(2, 10): A(f"v_add_f32 v110, v110, v{100+k}")
    wavesum_to_s(110, 46)
    A(f"v_mov_b32 v111, {H(f2u(1.0/640))}")
    A("v_mul_f32 v112, s46, v111")
    for k in range(10): A(f"v_sub_f32 v{100+k}, v{100+k}, v112")
    A("v_mul_f32 v110, v100, v100")
    for k in range(1, 10): A(f"v_fmac_f32 v110, v{100+k}, v{100+k}")
    wavesum_to_s(110, 46)
    A("v_mul_f32 v113, s46, v111")
    bf16r(112, 112); bf16r(113, 113)
    A(f"v_add_f32 v113, {H(f2u(1e-5))}, v113"); bf16r(113, 113)
    A("v_sqrt_f32 v113, v113"); bf16r(113, 113)
    A("v_rcp_f32 v114, v113")
    for k in range(2):
        x = 93 + k
        A(f"v_lshlrev_b32 v{x}, 16, v{x}"); A(f"v_sub_f32 v{x}, v{x}, v112"); bf16r(x, x)
        A(f"v_mul_f32 v115, v{x}, v114"); A(f"v_fma_f32 v116, -v115, v113, v{x}"); A("v_fmac_f32 v115, v116, v114")
        A(f"v_cvt_pk_bf16_f32 v{P0+k}, v115, v115")
    stamp(3)
    lds_wait(F_CLR)
    gemv(20, lambda j: (P0 + j // 16, j % 16), waits=lambda j: 19 - j)
    A("s_lshl_b32 s39, s3, 17")
    A("s_lshl_b32 s46, s30, 9"); A("s_add_u32 s46, s46, s39")
    A("v_lshl_add_u32 v4, v0, 4, s46")
    A("s_lshl_b32 s46, s28, 12"); A("s_add_u32 s46, s46, s39")
    A("v_lshl_add_u32 v5, v0, 4, s46")
    A("s_mov_b32 exec_hi, 0")
    A(f"global_store_dwordx4 v4, v[{ACC}:{ACC+3}], s[26:27] {SC}")
    A("s_mov_b64 exec, -1")
    stamp(4)
    A("s_cmp_eq_u32 s3, 0")
    A("s_cbranch_scc1 L_ab2")
    A("s_mov_b32 s32, s20"); A("s_mov_b32 s33, s21"); A(f"s_mov_b32 s34, {1728*640*2}"); A("s_mov_b32 s35, 0x20000")
    A("s_mul_i32 s36, s28, 81920"); A("s_mul_i32 s47, s29, 160"); A("s_add_u32 s36, s36, s47")
    A("v_and_b32 v6, 1, v1"); A("v_lshlrev_b32 v6, 2, v6"); A("v_and_b32 v7, 2, v1"); A("v_add_u32 v6, v6, v7")
    A("v_mul_u32_u24 v6, 1280, v6"); A("v_lshl_add_u32 v6, v3, 4, v6")
    A("s_mov_b32 s44, 0x03ff03ff"); A("s_mov_b32 s45, 0x03ff03ff")
    A("s_mov_b64 exec, s[44:45]")
    for m in range(8):
        A(f"buffer_load_dwordx4 {D(m)}, v6, s[32:35], s36 offen nt")
        A(f"buffer_load_dwordx4 {D(m+8)}, v6, s[32:35], s36 offen offset:1280 nt")
        if m < 7: A("s_add_u32 s36, s36, 10240")
    A("s_mov_b64 exec, -1")
    A.label("L_ab2")
    A("s_waitcnt vmcnt(0)")
    lds_wait(F_GRP)
    stamp(5)
    l = lab("ga"); d = lab("ge")
    A.label(l)
    for k in range(4): A(f"global_load_dwordx4 v[{96+4*k}:{99+4*k}], v5, s[26:27] offset:{1024*k} {SC}")
    A("s_waitcnt vmcnt(0)")
    A("v_max3_u32 v112, v96, v97, v98")
    for k in range(6): A(f"v_max3_u32 v112, v112, v{99+2*k}, v{100+2*k}")
    A("v_max_u32 v112, v112, v111")
    A("v_cmp_eq_u32 vcc, -1, v112")
    A(f"s_cbranch_vccz {d}")
    A("s_sleep 4")
    A("s_sub_u32 s38, s38, 1")
    A(f"s_cbranch_scc0 {l}"); A("s_branch L_end")
    A.label(d)
    stamp(6)
    for k in range(1, 4):
        A(f"v_pk_add_f32 v[96:97], v[96:97], v[{96+4*k}:{97+4*k}]")
        A(f"v_pk_add_f32 v[98:99], v[98:99], v[{98+4*k}:{99+4*k}]")
    A("v_permlane32_swap_b32 v96, v98")
    A("v_permlane32_swap_b32 v97, v99")
    A("v_add_f32 v96, v96, v98"); A("v_add_f32 v97, v97, v99")
    A("s_cmp_eq_u32 s3, 0")
    A("s_cbranch_scc0 L_b")
    A("v_cvt_pk_bf16_f32 v96, v96, v97")
    A("v_and_b32 v6, 1, v1"); A("v_lshlrev_b32 v6, 3, v6"); A("v_lshl_add_u32 v6, v3, 4, v6")
    A("v_lshrrev_b32 v7, 1, v1"); A("v_lshl_add_u32 v6, v7, 2, v6")
    A(f"ds_write_b32 v6, v96 offset:{L_Q}")
    lds_set(F_Q)
    stamp(7)
    A("s_branch L_end")
    A.label("L_b")
    A("v_mov_b32_dpp v98, v96 row_ror:8 row_mask:0xf bank_mask:0xf")
    A("v_mov_b32_dpp v96, v97 row_ror:8 row_mask:0xf bank_mask:0xc")
    A("v_mov_b32_dpp v97, v98 quad_perm:[0,1,2,3] row_mask:0xf bank_mask:0x3")
    bf16r(96, 96); bf16r(97, 97)
    silu(96, 96, 98); bf16r(96, 96)
    A("v_mul_f32 v96, v96, v97")
    A(f"v_cvt_pk_bf16_f32 v{P0}, v96, v96")
    gemv(16, lambda j: (P0, j))
    A("s_mul_i32 s46, s29, 20480"); A("s_lshl_b32 s47, s28, 4"); A("s_add_u32 s46, s46, s47"); A(f"s_add_u32 s46, s46, {SY+512}")
    A("v_lshl_add_u32 v7, v3, 1, v1"); A("v_lshl_add_u32 v7, v7, 10, s46")
    A("s_mov_b64 exec, 0x03ff03ff")
    A(f"global_store_dwordx4 v7, v[{ACC}:{ACC+3}], s[26:27] {SC}")
    A("s_mov_b64 exec, -1")
    stamp(7)
    A("s_branch L_end")
    A.label("L_c")
    A("s_setprio 3")
    for k in range(4): A(f"v_mov_b32 v{8+k}, -1")
    A("s_lshl_b32 s46, s30, 9")
    A("v_and_b32 v4, 31, v0"); A("v_lshl_add_u32 v4, v4, 4, s46")
    A("v_lshrrev_b32 v5, 5, v0"); A("v_lshl_add_u32 v5, v5, 17, v4")
    stamp(1)
    A(f"global_store_dwordx4 v5, v[8:11], s[26:27] {SC}")
    A(f"v_add_u32 v6, {SO}, v4")
    A("s_lshl_b32 s46, s30, 4"); A(f"s_add_u32 s46, s46, {ML}"); A("v_mov_b32 v7, s46")
    A("v_cmp_gt_u32 vcc, 32, v0")
    A("v_cndmask_b32 v6, v7, v6, vcc")
    A("s_mov_b32 s44, -1"); A("s_mov_b32 s45, 1")
    A("s_mov_b64 exec, s[44:45]")
    A(f"global_store_dwordx4 v6, v[8:11], s[26:27] {SC}")
    A("s_mov_b64 exec, -1")
    A("s_mul_i32 s46, s29, 20480"); A("s_lshl_b32 s47, s28, 4"); A("s_add_u32 s46, s46, s47"); A(f"s_add_u32 s46, s46, {SY}")
    A("v_and_b32 v4, 31, v0"); A("v_lshl_add_u32 v4, v4, 10, s46"); A("v_lshrrev_b32 v5, 5, v0"); A("v_lshl_add_u32 v4, v5, 9, v4")
    A("s_cmp_ge_u32 s28, 27"); A("s_cselect_b32 s46, 0, -1"); A("v_mov_b32 v12, s46")
    A("v_cndmask_b32 v12, v12, v8, vcc")
    for k in range(1, 4): A(f"v_mov_b32 v{12+k}, v12")
    A("s_mov_b32 s44, 0xfffff"); A("s_mov_b32 s45, 0xfffff")
    A("s_mov_b64 exec, s[44:45]")
    A(f"global_store_dwordx4 v4, v[12:15], s[26:27] {SC}")
    A("s_mov_b64 exec, -1")
    A("v_mov_b32 v5, s30"); A("v_mov_b32 v6, 1")
    A("s_waitcnt vmcnt(0)")
    stamp(2)
    A("s_mov_b64 exec, 1")
    A(f"global_store_byte v5, v6, s[24:25] {SC}")
    A("s_mov_b64 exec, -1")
    lds_set(F_CLR)
    A("s_lshl_b32 s46, s28, 3"); A("v_mov_b32 v5, s46")
    A("s_mov_b32 s47, 0x01010101")
    l = lab("fg"); d = lab("fe")
    A.label(l)
    A(f"global_load_dwordx2 v[16:17], v5, s[24:25] {SC}")
    A("s_waitcnt vmcnt(0)")
    A("v_and_b32 v16, v16, v17")
    A("v_cmp_ne_u32 vcc, s47, v16")
    A(f"s_cbranch_vccz {d}")
    A("s_sleep 4")
    A("s_sub_u32 s38, s38, 1")
    A(f"s_cbranch_scc0 {l}"); A("s_branch L_end")
    A.label(d)
    lds_set(F_GRP)
    stamp(3)
    A("s_cmp_ge_u32 s28, 20")
    A("s_cbranch_scc1 L_end")
    A("v_bfe_u32 v6, v0, 2, 1"); A("v_bfe_u32 v7, v0, 3, 1"); A("v_lshl_add_u32 v6, v6, 1, v7")
    A("s_mul_i32 s46, s29, 80"); A("s_lshl_b32 s48, s28, 2"); A("s_add_u32 s46, s46, s48")
    A("v_add_lshl_u32 v6, v6, s46, 1")
    A("global_load_ushort v20, v6, s[4:5]")
    A("v_lshlrev_b32 v5, 2, v0")
    l = lab("fa"); d = lab("fb")
    A.label(l)
    A(f"global_load_dword v16, v5, s[24:25] {SC}")
    A("s_waitcnt vmcnt(0)")
    A("v_cmp_ne_u32 vcc, s47, v16")
    A(f"s_cbranch_vccz {d}")
    A("s_sleep 8")
    A("s_sub_u32 s38, s38, 1")
    A(f"s_cbranch_scc0 {l}"); A("s_branch L_end")
    A.label(d)
    stamp(4)
    A("v_lshlrev_b32 v20, 16, v20")
    A("s_mul_i32 s46, s29, 20"); A("s_add_u32 s46, s46, s28"); A("s_lshl_b32 s46, s46, 10"); A(f"s_add_u32 s46, s46, {SY}")
    A("v_lshl_add_u32 v5, v0, 4, s46")
    lds_wait(F_O, sleep=2)
    stamp(5)
    l = lab("sy"); d = lab("sz")
    A.label(l)
    A(f"global_load_dwordx4 v[8:11], v5, s[26:27] {SC}")
    A("s_waitcnt vmcnt(0)")
    A("v_max3_u32 v12, v8, v9, v10")
    A("v_max_u32 v12, v12, v11")
    A("v_cmp_eq_u32 vcc, -1, v12")
    A(f"s_cbranch_vccz {d}")
    A("s_sub_u32 s38, s38, 1")
    A(f"s_cbranch_scc0 {l}"); A("s_branch L_end")
    A.label(d)
    stamp(6)
    A("v_add_f32_dpp v8, v8, v8 row_ror:8 row_mask:0xf bank_mask:0x3")
    A("v_add_f32_dpp v10, v10, v10 row_ror:8 row_mask:0xf bank_mask:0x3")
    A("v_add_f32_dpp v8, v9, v9 row_ror:8 row_mask:0xf bank_mask:0xc")
    A("v_add_f32_dpp v10, v11, v11 row_ror:8 row_mask:0xf bank_mask:0xc")
    A("v_add_f32_dpp v8, v8, v8 row_half_mirror row_mask:0xf bank_mask:0x5")
    A("v_add_f32_dpp v8, v10, v10 row_half_mirror row_mask:0xf bank_mask:0xa")
    A("v_add_f32_dpp v8, v8, v8 quad_perm:[2,3,0,1] row_mask:0xf bank_mask:0xf")
    A("v_add_f32_dpp v8, v8, v8 quad_perm:[1,0,3,2] row_mask:0xf bank_mask:0xf")
    A("v_mov_b32 v9, v8")
    A("v_permlane16_swap_b32 v8, v9")
    A("v_add_f32 v8, v8, v9")
    A("v_mov_b32 v9, v8")
    A("v_permlane32_swap_b32 v8, v9")
    bf16r(8, 8); bf16r(9, 9)
    silu(9, 9, 10); bf16r(9, 9)
    A("v_mul_f32 v8, v8, v9"); bf16r(8, 8)
    A("v_add_f32 v8, v8, v20")
    A("v_cvt_pk_bf16_f32 v8, v8, v8")
    A("s_mov_b64 exec, 0x1111")
    A("global_store_short v6, v8, s[22:23]")
    A("s_mov_b64 exec, -1")
    stamp(7)
    A.label("L_end")
    if stamps:
        A("s_memrealtime s[84:85]")
        A("s_waitcnt vmcnt(0) lgkmcnt(0)")
        A("s_mul_i32 s46, s2, 11"); A("s_add_u32 s46, s46, s3"); A("s_lshl_b32 s46, s46, 6"); A("s_add_u32 s46, s46, 0x20000000")
        A("v_mov_b32 v4, s46")
        for k in range(11): A(f"v_mov_b32 v{8+k}, s{64+2*k}")
        A("v_mov_b32 v19, s38")
        A("s_mov_b64 exec, 1")
        for q in range(3): A(f"global_store_dwordx4 v4, v[{8+4*q}:{11+4*q}], s[26:27] offset:{16*q}")
    A.label("L_exit")
    A("s_endpgm")
    tail = ['.section .rodata,"a"', ".p2align 6", f".amdhsa_kernel {KN}", "  .amdhsa_next_free_vgpr 168",
            "  .amdhsa_next_free_sgpr 96", "  .amdhsa_accum_offset 168", "  .amdhsa_group_segment_fixed_size 0",
            "  .amdhsa_kernarg_size 96", "  .amdhsa_user_sgpr_count 2", "  .amdhsa_user_sgpr_kernarg_segment_ptr 1",
            "  .amdhsa_system_sgpr_workgroup_id_x 1", ".end_amdhsa_kernel"]
    return "\n".join(hdr) + "\n" + A.finish() + "\n".join(tail) + "\n"

if __name__ == "__main__":
    d = "code"
    open(d + "/exp/k1.s", "w").write(gen())
    open(d + "/exp/k1_ts.s", "w").write(gen(stamps=True))
```

```python
import sys, os
sys.path.insert(0, os.path.dirname(os.path.abspath(__file__)))
from asmlib import Asm
import struct
KN = "recurrent_scan__sliding_block_cached__swiglu_ffn__decode_kernel"
def f2u(x): return struct.unpack("<I", struct.pack("<f", x))[0]
def H(x): return "0x%08x" % (x & 0xffffffff)

SQ, SF, SO, ML, SY, EP = 0x0, 0x20000, 0x40000, 0x60000, 0x80000, 0x61000
L_MX, L_LS, F_Q, F_P, TK_O, TK_Y, F_O, F_B, F_ML, F_SC = 0x0, 0x40, 0x88, 0x90, 0xa0, 0xa4, 0xa8, 0xac, 0xb0, 0xb4
L_Q, L_P, L_SC, L_O, L_Y = 0x100, 0x200, 0xa00, 0x1000, 0x2000
LDS_BYTES = 0x3000
LOG2E = 1.4426950408889634
TAGBITS = 10
TM = (1 << TAGBITS) - 1

def gen(stamps=False, hmul=37, kpre=4, prefetch=True, SC="sc1", SPIN=1 << 17):
    A = Asm()
    uid = [0]
    def lab(p):
        uid[0] += 1
        return f"L_{p}{uid[0]}"
    def stamp(k):
        if stamps: A(f"s_memrealtime s[{64+2*k}:{65+2*k}]")
    def D(j): return f"v[{8+4*j}:{11+4*j}]"
    VM, P0, P1, VT, ACC, A0, A1 = 136, 140, 141, 143, 144, 148, 152
    DPPF = "row_mask:0xf bank_mask:0xf"
    def bf16r(dst, src):
        A(f"v_cvt_pk_bf16_f32 v{dst}, v{src}, v{src}")
        A(f"v_and_b32 v{dst}, 0xffff0000, v{dst}")
    def loop_tail(l, d, sleep):
        A(f"s_cbranch_vccz {d}")
        if sleep: A(f"s_sleep {sleep}")
        A("s_sub_u32 s38, s38, 1")
        A(f"s_cbranch_scc0 {l}"); A("s_branch L_end")
        A.label(d)
    def lds_wait(off, extra="", sleep=1, vt=156, addr=2, bad="0"):
        l = lab("lw"); d = lab("ld")
        A.label(l)
        A(f"ds_read_b32 v{vt}, v{addr} offset:{off}")
        if extra: A(extra)
        A("s_waitcnt lgkmcnt(0)")
        A(f"v_cmp_eq_u32 vcc, {bad}, v{vt}")
        loop_tail(l, d, sleep)
    def lds_set(off, vt=157):
        A(f"v_mov_b32 v{vt}, 1")
        A(f"ds_write_b32 v2, v{vt} offset:{off}")
    def tag_setup():
        A("s_add_u32 s57, s56, 1")
        A(f"s_movk_i32 s58, {TM}")
        A(f"v_mov_b32 v{VT}, s57")
    def tag_put(r, n=4):
        for t in range(n): A(f"v_bfi_b32 v{r+t}, s58, v{VT}, v{r+t}")
    def tag_check(r, n, t1, t2):
        A(f"v_bitop3_b32 v{t1}, v{r}, v{r+1}, v{VT} bitop3:0x7e")
        for k in range(1, n // 2):
            A(f"v_bitop3_b32 v{t2}, v{r+2*k}, v{r+2*k+1}, v{VT} bitop3:0x7e")
            A(f"v_or_b32 v{t1}, v{t1}, v{t2}")
        A(f"v_and_b32 v{t1}, s58, v{t1}")
        A(f"v_cmp_ne_u32 vcc, 0, v{t1}")
        for k in range(n): A(f"v_and_b32 v{r+k}, {H(~TM)}, v{r+k}")
    def masks():
        A("v_and_b32 v156, 1, v3"); A("v_lshlrev_b32 v156, 4, v156"); A("v_mov_b32 v157, 0xffff")
        A("v_lshlrev_b32 v157, v156, v157"); A("v_lshrrev_b32 v156, 1, v3")
        for u in range(4): A(f"v_cmp_eq_u32 s[{48+2*u}:{49+2*u}], {u}, v156")
        for u in range(4): A(f"v_cndmask_b32 v{VM+u}, 0, v157, s[{48+2*u}:{49+2*u}]")
    def abuild(dst, preg, k):
        for u in range(4):
            A(f"v_and_b32_dpp v{dst+u}, v{preg}, v{VM+u} row_newbcast:{k} {DPPF}")
    def gemv(n, src, waits=None):
        abuild(A0, *src(0))
        for j in range(n):
            cur = A0 if j % 2 == 0 else A1
            nxt = A1 if j % 2 == 0 else A0
            if j + 1 < n: abuild(nxt, *src(j + 1))
            if waits is not None and waits(j) is not None: A(f"s_waitcnt vmcnt({waits(j)})")
            c = "0" if j == 0 else f"v[{ACC}:{ACC+3}]"
            A(f"v_mfma_f32_16x16x32_bf16 v[{ACC}:{ACC+3}], v[{cur}:{cur+3}], {D(j)}, {c}")
    def rowsum(v, op="v_add_f32"):
        for k in (8, 4, 2, 1):
            A(f"{op}_dpp v{v}, v{v}, v{v} row_ror:{k} {DPPF}")
    def wavesum_to_s(v, s):
        rowsum(v)
        A(f"v_add_f32_dpp v{v}, v{v}, v{v} row_bcast:15 row_mask:0xa bank_mask:0xf")
        A(f"v_add_f32_dpp v{v}, v{v}, v{v} row_bcast:31 row_mask:0xc bank_mask:0xf")
        A(f"v_readlane_b32 s{s}, v{v}, 63")
    def combine_setup():
        A("s_lshl_b32 s46, s31, 10")
        A("v_add_u32 v5, s46, v1")
        A("v_mov_b32 v6, 1")
    def combine(lbase, tk, endlab):
        A(f"ds_write_b128 v5, v[{ACC}:{ACC+3}] offset:{lbase}")
        A("s_mov_b64 exec, 1")
        A(f"ds_add_rtn_u32 v6, v2, v6 offset:{tk}")
        A("s_mov_b64 exec, -1")
        A(f"ds_read_b128 v[156:159], v1 offset:{lbase}")
        A(f"ds_read_b128 v[160:163], v1 offset:{lbase+1024}")
        A(f"ds_read_b128 v[164:167], v1 offset:{lbase+2048}")
        A(f"ds_read_b128 v[148:151], v1 offset:{lbase+3072}")
        A("s_waitcnt lgkmcnt(0)")
        A("v_readfirstlane_b32 s46, v6")
        A("v_pk_add_f32 v[156:157], v[156:157], v[160:161]")
        A("v_pk_add_f32 v[158:159], v[158:159], v[162:163]")
        A("v_pk_add_f32 v[164:165], v[164:165], v[148:149]")
        A("v_pk_add_f32 v[166:167], v[166:167], v[150:151]")
        A("s_cmp_eq_u32 s46, 3")
        A(f"s_cbranch_scc0 {endlab}")
        A("v_pk_add_f32 v[156:157], v[156:157], v[164:165]")
        A("v_pk_add_f32 v[158:159], v[158:159], v[166:167]")
        tag_put(156)
    def silu(dst, z, t):
        A(f"v_mul_f32 v{t}, {H(f2u(-LOG2E))}, v{z}")
        A(f"v_exp_f32 v{t}, v{t}")
        A(f"v_add_f32 v{t}, 1.0, v{t}")
        A(f"v_rcp_f32 v{t}, v{t}")
        A(f"v_mul_f32 v{dst}, v{z}, v{t}")
    def eload():
        A(f"s_load_dword s56, s[26:27], {EP}")

    hdr = [f"; @launch grid=(256,1,1) block=(768,1,1) lds={LDS_BYTES}",
           '.amdgcn_target "amdgcn-amd-amdhsa--gfx950"', ".text", f".globl {KN}", ".p2align 8", f".type {KN},@function"]
    A.label(KN)
    stamp(0)
    A("s_load_dwordx16 s[4:19], s[0:1], 0")
    A("s_load_dwordx8 s[20:27], s[0:1], 64")
    A("s_cmp_ge_u32 s2, 256")
    A("s_cbranch_scc1 L_exit")
    A("v_lshrrev_b32 v1, 6, v0")
    A("v_and_b32 v0, 63, v0")
    A("v_readfirstlane_b32 s3, v1")
    A("v_mov_b32 v2, 0")
    A("v_and_b32 v3, 15, v0")
    A("s_and_b32 s28, s2, 31")
    A("s_lshr_b32 s29, s2, 5")
    A(f"s_mov_b32 s38, {SPIN}")
    A("s_lshl_b32 s30, s28, 3")
    A("s_add_u32 s30, s30, s29")
    A("s_cmp_lt_u32 s3, 2")
    A("s_cbranch_scc1 L_ab")
    A("s_cmp_lt_u32 s3, 4")
    A("s_cbranch_scc1 L_cd")
    A("s_and_b32 s31, s3, 3")
    A("s_lshl_b32 s36, s28, 23")
    A("s_lshl_b32 s37, s29, 17")
    A("s_add_u32 s36, s36, s37")
    A("s_add_u32 s36, s36, 0x700000")
    A(f"s_mul_i32 s37, s2, {hmul}")
    A("s_and_b32 s37, s37, 127")
    A("s_xor_b32 s37, s37, s31")
    A("s_lshl_b32 s37, s37, 10")
    A("s_add_u32 s36, s36, s37")
    A("v_lshlrev_b32 v1, 4, v0")
    A("s_mov_b32 s34, 0x10000000")
    A("s_mov_b32 s35, 0x20000")
    A("s_setprio 2")
    A("s_cmp_lt_u32 s3, 8")
    A("s_cbranch_scc1 L_kv1")
    A("s_setprio 1")
    A("s_barrier")
    A.label("L_kv1")
    A("s_waitcnt lgkmcnt(0)")
    A("s_cselect_b32 s32, s6, s8")
    A("s_cselect_b32 s33, s7, s9")
    stamp(1)
    for j in range(32):
        if j == kpre:
            eload()
            A("s_cmp_lt_u32 s3, 8")
            A("s_cbranch_scc0 L_kv2")
            A("s_barrier")
            A.label("L_kv2")
        if j == 0:
            A(f"buffer_load_dwordx4 {D(j)}, v1, s[32:35], s36 offen nt")
        else:
            A(f"s_xor_b32 s37, s36, {j << 12}")
            A(f"buffer_load_dwordx4 {D(j)}, v1, s[32:35], s37 offen nt")
    stamp(2)
    masks()
    A("s_waitcnt lgkmcnt(0)")
    tag_setup()
    A("s_cmp_lt_u32 s3, 8")
    A("s_cbranch_scc1 L_k")
    A("s_lshl_b32 s46, s31, 9")
    A("v_lshl_add_u32 v4, v0, 3, s46")
    A("s_lshl_b32 s46, s31, 2")
    A("v_mov_b32 v5, s46")
    lds_wait(F_P, extra=f"ds_read_b64 v[{P0}:{P1}], v4 offset:{L_P}", addr=5)
    stamp(3)
    A("s_setprio 3")
    A("s_lshl_b32 s47, s30, 9")
    A(f"s_add_u32 s47, s47, {SO}")
    A("v_add_u32 v7, s47, v1")
    combine_setup()
    gemv(32, lambda j: (P0 + j // 16, j % 16), waits=lambda j: 31 - j)
    stamp(4)
    combine(L_O, TK_O, "L_end")
    A("s_mov_b32 exec_hi, 0")
    A(f"global_store_dwordx4 v7, v[156:159], s[26:27] {SC}")
    A("s_mov_b64 exec, -1")
    lds_set(F_O, 160)
    stamp(5)
    A("s_branch L_end")
    A.label("L_k")
    A("v_lshlrev_b32 v4, 4, v3")
    A("s_mov_b32 s40, 0xcccccccc"); A("s_mov_b32 s41, 0xcccccccc")
    A("s_mov_b32 s42, 0xaaaaaaaa"); A("s_mov_b32 s43, 0xaaaaaaaa")
    lds_wait(F_Q, extra=f"ds_read_b128 v[160:163], v4 offset:{L_Q}", sleep=2)
    stamp(3)
    A("s_setprio 3")
    def bitrev4(x): return ((x & 1) << 3) | ((x & 2) << 1) | ((x & 4) >> 1) | ((x & 8) >> 3)
    for half in range(2):
        A(f"s_waitcnt vmcnt({16 if half == 0 else 0})")
        for j4 in range(4):
            js = [16 * half + 4 * j4 + t for t in range(4)]
            for k in range(4):
                for j in js:
                    b = 8 + 4 * j
                    if k == 0: A(f"v_dot2_f32_bf16 v{b}, v{b}, v160, 0")
                    else: A(f"v_dot2c_f32_bf16 v{b}, v{b+k}, v{160+k}")
        a = [8 + 4 * (16 * half + bitrev4(m)) for m in range(16)]
        for k in range(8): A(f"v_add_f32_dpp v{a[2*k]}, v{a[2*k]}, v{a[2*k]} row_ror:8 row_mask:0xf bank_mask:0x3")
        for k in range(8): A(f"v_add_f32_dpp v{a[2*k]}, v{a[2*k+1]}, v{a[2*k+1]} row_ror:8 row_mask:0xf bank_mask:0xc")
        b = [a[2*k] for k in range(8)]
        for k in range(4): A(f"v_add_f32_dpp v{b[2*k]}, v{b[2*k]}, v{b[2*k]} row_half_mirror row_mask:0xf bank_mask:0x5")
        for k in range(4): A(f"v_add_f32_dpp v{b[2*k]}, v{b[2*k+1]}, v{b[2*k+1]} row_half_mirror row_mask:0xf bank_mask:0xa")
        c = [b[2*k] for k in range(4)]
        for k in range(4): A(f"v_add_f32_dpp v{c[k]}, v{c[k]}, v{c[k]} quad_perm:[2,3,0,1] {DPPF}")
        for k in range(2): A(f"v_cndmask_b32 v{c[2*k]}, v{c[2*k]}, v{c[2*k+1]}, s[40:41]")
        dd = [c[0], c[2]]
        for k in range(2): A(f"v_add_f32_dpp v{dd[k]}, v{dd[k]}, v{dd[k]} quad_perm:[1,0,3,2] {DPPF}")
        A(f"v_cndmask_b32 v{164+half}, v{dd[0]}, v{dd[1]}, s[42:43]")
    A("v_cvt_pk_bf16_f32 v166, v164, v165")
    A("v_lshlrev_b32 v164, 16, v166"); A("v_and_b32 v165, 0xffff0000, v166")
    A(f"v_mul_f32 v164, {H(f2u(128 ** -0.5))}, v164"); A(f"v_mul_f32 v165, {H(f2u(128 ** -0.5))}, v165")
    A("v_cvt_pk_bf16_f32 v166, v164, v165")
    A("v_lshlrev_b32 v164, 16, v166"); A("v_and_b32 v165, 0xffff0000, v166")
    A(f"v_mul_f32 v164, {H(f2u(LOG2E))}, v164"); A(f"v_mul_f32 v165, {H(f2u(LOG2E))}, v165")
    A("v_max_f32 v160, v164, v165")
    rowsum(160, "v_max_f32")
    A("v_lshrrev_b32 v5, 4, v0"); A("s_lshl_b32 s46, s31, 4"); A("v_lshl_add_u32 v5, v5, 2, s46")
    A("v_lshlrev_b32 v6, 2, v3")
    A(f"ds_write_b32 v5, v160 offset:{L_MX}")
    lds_wait(L_MX, sleep=0, vt=160, addr=6, bad="-1")
    rowsum(160, "v_max_f32")
    A("v_sub_f32 v164, v164, v160"); A("v_sub_f32 v165, v165, v160")
    A("v_exp_f32 v164, v164"); A("v_exp_f32 v165, v165")
    A("s_lshl_b32 s46, s31, 9")
    A("v_lshl_add_u32 v4, v0, 3, s46")
    A(f"v_cvt_pk_bf16_f32 v{P0}, v164, v164"); A(f"v_cvt_pk_bf16_f32 v{P1}, v165, v165")
    A("v_add_f32 v162, v164, v165")
    A("s_lshl_b32 s46, s31, 2")
    A("v_mov_b32 v7, s46"); A("v_mov_b32 v157, 1")
    A(f"ds_write_b64 v4, v[{P0}:{P1}] offset:{L_P}")
    A(f"ds_write_b32 v7, v157 offset:{F_P}")
    rowsum(162)
    A(f"ds_write_b32 v5, v162 offset:{L_LS}")
    stamp(4)
    A("s_cmp_eq_u32 s31, 0")
    A("s_cbranch_scc0 L_k2")
    lds_wait(L_LS, sleep=0, vt=162, addr=6, bad="-1")
    rowsum(162)
    A("s_lshl_b32 s46, s30, 4"); A(f"s_add_u32 s46, s46, {ML}"); A("v_mov_b32 v7, s46")
    A(f"v_mov_b32 v161, v{VT}"); A(f"v_mov_b32 v163, v{VT}")
    A("s_mov_b64 exec, 1")
    A(f"global_store_dwordx4 v7, v[160:163], s[26:27] {SC}")
    A("s_mov_b64 exec, -1")
    A("s_waitcnt vmcnt(0)")
    lds_set(F_ML)
    A.label("L_k2")
    A("v_and_b32 v4, 7, v0")
    stamp(5)
    A("s_mov_b32 s32, s12"); A("s_mov_b32 s33, s13"); A(f"s_mov_b32 s34, {4096*640*2}")
    A("s_lshl_b32 s46, s28, 7"); A("s_and_b32 s47, s31, 1"); A("s_lshl_b32 s47, s47, 6"); A("s_add_u32 s46, s46, s47")
    A("s_lshr_b32 s47, s31, 1"); A("s_lshl_b32 s47, s47, 2"); A("s_add_u32 s46, s46, s47")
    A("s_mul_i32 s36, s46, 1280"); A("s_mul_i32 s47, s29, 160"); A("s_add_u32 s36, s36, s47")
    A("s_add_u32 s37, s36, 10240")
    A("v_lshrrev_b32 v5, 4, v0"); A("v_mul_u32_u24 v5, 20480, v5"); A("v_lshl_add_u32 v5, v3, 4, v5")
    A("s_mov_b32 s44, 0x03ff03ff"); A("s_mov_b32 s45, 0x03ff03ff")
    A("s_setprio 0")
    A("s_mov_b64 exec, s[44:45]")
    for k in range(8):
        b1, b2, b3 = k & 1, (k >> 1) & 1, k >> 2
        A(f"buffer_load_dwordx4 {D(k)}, v5, s[32:35], s{37 if b3 else 36} offen offset:{(2*b1+b2)*1280} nt")
    A("s_mov_b64 exec, -1")
    A("s_setprio 3")
    stamp(6)
    A("s_lshl_b32 s46, s28, 12"); A("s_lshl_b32 s47, s31, 7"); A("s_add_u32 s46, s46, s47"); A(f"s_add_u32 s46, s46, {SO}")
    A("v_lshrrev_b32 v40, 3, v0"); A("v_lshlrev_b32 v40, 4, v40"); A("v_lshl_add_u32 v40, v4, 9, v40"); A("v_add_u32 v40, s46, v40")
    A("s_mul_i32 s46, s29, 20480"); A("s_lshl_b32 s47, s28, 4"); A("s_add_u32 s46, s46, s47"); A(f"s_add_u32 s46, s46, {SY}")
    A("v_lshrrev_b32 v7, 4, v0"); A("v_lshl_add_u32 v7, v3, 1, v7"); A("v_lshl_add_u32 v7, v7, 10, s46")
    A("v_lshlrev_b32 v4, 2, v4")
    combine_setup()
    lds_wait(F_SC, extra=f"ds_read_b32 v142, v4 offset:{L_SC}", sleep=2)
    lds_wait(F_O, sleep=1)
    stamp(7)
    l = lab("so"); d = lab("se")
    A.label(l)
    A(f"global_load_dwordx4 v[160:163], v40, s[26:27] {SC}")
    A("s_waitcnt vmcnt(0)")
    tag_check(160, 4, 164, 165)
    loop_tail(l, d, 0)
    stamp(8)
    for t in range(4): A(f"v_mul_f32 v{160+t}, v142, v{160+t}")
    A("v_add_f32_dpp v160, v160, v160 row_half_mirror row_mask:0xf bank_mask:0x5")
    A("v_add_f32_dpp v162, v162, v162 row_half_mirror row_mask:0xf bank_mask:0x5")
    A("v_add_f32_dpp v160, v161, v161 row_half_mirror row_mask:0xf bank_mask:0xa")
    A("v_add_f32_dpp v162, v163, v163 row_half_mirror row_mask:0xf bank_mask:0xa")
    A(f"v_add_f32_dpp v160, v160, v160 quad_perm:[2,3,0,1] {DPPF}")
    A(f"v_add_f32_dpp v162, v162, v162 quad_perm:[2,3,0,1] {DPPF}")
    A("v_cndmask_b32 v160, v160, v162, s[40:41]")
    A(f"v_add_f32_dpp v160, v160, v160 quad_perm:[1,0,3,2] {DPPF}")
    A(f"v_cvt_pk_bf16_f32 v{P0}, v160, v160")
    gemv(8, lambda j: (P0, 2 * j))
    combine(L_Y, TK_Y, "L_end")
    A("s_mov_b64 exec, 0x03ff03ff")
    A(f"global_store_dwordx4 v7, v[156:159], s[26:27] {SC}")
    A("s_mov_b64 exec, -1")
    stamp(9)
    A("s_branch L_end")
    A.label("L_ab")
    A("s_setprio 3")
    A("s_cmp_eq_u32 s3, 1"); A("s_cselect_b32 s46, 27, 64"); A("s_cmp_ge_u32 s28, s46"); A("s_cbranch_scc1 L_end")
    A("v_lshrrev_b32 v1, 4, v0")
    A("v_mul_u32_u24 v4, 20, v0")
    A("v_mul_u32_u24 v5, 20, v1")
    A("s_mul_i32 s46, s29, 80")
    A("v_add_u32 v5, s46, v5")
    A("v_add_lshl_u32 v6, v5, v3, 1")
    A("v_and_b32 v7, 3, v3"); A("v_add_lshl_u32 v7, v5, v7, 1")
    A("s_waitcnt lgkmcnt(0)")
    stamp(1)
    eload()
    A("global_load_dwordx4 v[88:91], v4, s[4:5]")
    A("global_load_dword v92, v4, s[4:5] offset:16")
    A("global_load_ushort v93, v6, s[4:5]")
    A("global_load_ushort v94, v7, s[4:5] offset:32")
    A("s_add_u32 s48, s10, 128"); A("s_addc_u32 s49, s11, 0")
    A("s_cmp_eq_u32 s3, 0")
    A("s_cselect_b32 s50, s10, s16"); A("s_cselect_b32 s51, s11, s17")
    A("s_cselect_b32 s48, s48, s18"); A("s_cselect_b32 s49, s49, s19")
    A("s_movk_i32 s44, 3456"); A("s_cselect_b32 s44, 8192, s44"); A("s_mov_b32 s45, 0")
    A("s_cselect_b32 s46, 8, 7"); A("s_lshl_b32 s46, s28, s46")
    A("v_mul_lo_u32 v6, v5, s44")
    A("v_and_b32 v7, 7, v3"); A("v_lshl_add_u32 v6, v7, 4, v6"); A("v_add_u32 v6, s46, v6"); A("v_mov_b32 v7, 0")
    A("v_cmp_gt_u32 vcc, 8, v3")
    A("v_mov_b32 v4, s48"); A("v_mov_b32 v5, s49"); A("v_mov_b32 v95, s50"); A("v_mov_b32 v96, s51")
    A("v_cndmask_b32 v4, v4, v95, vcc"); A("v_cndmask_b32 v5, v5, v96, vcc")
    A("v_lshl_add_u64 v[4:5], v[6:7], 0, v[4:5]")
    for n in range(20):
        A(f"global_load_dwordx4 {D(n)}, v[4:5], off nt")
        if n < 19: A("v_lshl_add_u64 v[4:5], v[4:5], 0, s[44:45]")
    A("s_waitcnt lgkmcnt(0)")
    A("s_barrier")
    stamp(2)
    masks()
    tag_setup()
    A("s_waitcnt vmcnt(20)")
    for k in range(5):
        A(f"v_lshlrev_b32 v{100+2*k}, 16, v{88+k}"); A(f"v_and_b32 v{101+2*k}, 0xffff0000, v{88+k}")
    A("v_add_f32 v110, v100, v101")
    for k in range(2, 10): A(f"v_add_f32 v110, v110, v{100+k}")
    wavesum_to_s(110, 46)
    A(f"v_mov_b32 v111, {H(f2u(1.0/640))}")
    A("v_mul_f32 v112, s46, v111")
    for k in range(10): A(f"v_sub_f32 v{100+k}, v{100+k}, v112")
    A("v_mul_f32 v110, v100, v100")
    for k in range(1, 10): A(f"v_fmac_f32 v110, v{100+k}, v{100+k}")
    wavesum_to_s(110, 46)
    A("v_mul_f32 v113, s46, v111")
    bf16r(112, 112); bf16r(113, 113)
    A(f"v_add_f32 v113, {H(f2u(1e-5))}, v113"); bf16r(113, 113)
    A("v_sqrt_f32 v113, v113"); bf16r(113, 113)
    A("v_rcp_f32 v114, v113")
    for k in range(2):
        x = 93 + k
        A(f"v_lshlrev_b32 v{x}, 16, v{x}"); A(f"v_sub_f32 v{x}, v{x}, v112"); bf16r(x, x)
        A(f"v_mul_f32 v115, v{x}, v114"); A(f"v_fma_f32 v116, -v115, v113, v{x}"); A("v_fmac_f32 v115, v116, v114")
        A(f"v_cvt_pk_bf16_f32 v{P0+k}, v115, v115")
    stamp(3)
    A("s_lshl_b32 s39, s3, 17")
    A("s_lshl_b32 s46, s30, 9"); A("s_add_u32 s46, s46, s39")
    A("v_lshl_add_u32 v4, v0, 4, s46")
    A("s_lshl_b32 s46, s28, 12"); A("s_add_u32 s46, s46, s39")
    A("v_lshl_add_u32 v5, v0, 4, s46")
    gemv(20, lambda j: (P0 + j // 16, j % 16), waits=lambda j: 19 - j)
    tag_put(ACC)
    A("s_mov_b32 exec_hi, 0")
    A(f"global_store_dwordx4 v4, v[{ACC}:{ACC+3}], s[26:27] {SC}")
    A("s_mov_b64 exec, -1")
    stamp(4)
    A("s_waitcnt vmcnt(0)")
    A("s_cmp_eq_u32 s3, 0")
    A("s_cbranch_scc1 L_ab2")
    lds_set(F_B)
    A("s_branch L_end")
    A.label("L_ab2")
    stamp(5)
    l = lab("ga"); d = lab("ge")
    A.label(l)
    for k in range(4): A(f"global_load_dwordx4 v[{96+4*k}:{99+4*k}], v5, s[26:27] offset:{1024*k} {SC}")
    A("s_waitcnt vmcnt(0)")
    tag_check(96, 16, 112, 113)
    loop_tail(l, d, 4)
    stamp(6)
    for k in range(1, 4):
        A(f"v_pk_add_f32 v[96:97], v[96:97], v[{96+4*k}:{97+4*k}]")
        A(f"v_pk_add_f32 v[98:99], v[98:99], v[{98+4*k}:{99+4*k}]")
    A("v_permlane32_swap_b32 v96, v98")
    A("v_permlane32_swap_b32 v97, v99")
    A("v_add_f32 v96, v96, v98"); A("v_add_f32 v97, v97, v99")
    A("s_cmp_eq_u32 s3, 0")
    A("s_cbranch_scc0 L_b")
    A("v_cvt_pk_bf16_f32 v96, v96, v97")
    A("v_and_b32 v6, 1, v1"); A("v_lshlrev_b32 v6, 3, v6"); A("v_lshl_add_u32 v6, v3, 4, v6")
    A("v_lshrrev_b32 v7, 1, v1"); A("v_lshl_add_u32 v6, v7, 2, v6")
    A(f"ds_write_b32 v6, v96 offset:{L_Q}")
    lds_set(F_Q)
    stamp(7)
    A("s_branch L_end")
    A.label("L_b")
    A(f"v_mov_b32_dpp v98, v96 row_ror:8 {DPPF}")
    A("v_mov_b32_dpp v96, v97 row_ror:8 row_mask:0xf bank_mask:0xc")
    A("v_mov_b32_dpp v97, v98 quad_perm:[0,1,2,3] row_mask:0xf bank_mask:0x3")
    bf16r(96, 96); bf16r(97, 97)
    silu(96, 96, 98); bf16r(96, 96)
    A("v_mul_f32 v96, v96, v97")
    A(f"v_cvt_pk_bf16_f32 v{P0}, v96, v96")
    A("s_mov_b32 s32, s20"); A("s_mov_b32 s33, s21"); A(f"s_mov_b32 s34, {1728*640*2}"); A("s_mov_b32 s35, 0x20000")
    A("s_mul_i32 s36, s28, 81920"); A("s_mul_i32 s47, s29, 160"); A("s_add_u32 s36, s36, s47")
    A("v_and_b32 v6, 1, v1"); A("v_lshlrev_b32 v6, 2, v6"); A("v_and_b32 v4, 2, v1"); A("v_add_u32 v6, v6, v4")
    A("v_mul_u32_u24 v6, 1280, v6"); A("v_lshl_add_u32 v6, v3, 4, v6")
    A("s_mov_b32 s44, 0x03ff03ff"); A("s_mov_b32 s45, 0x03ff03ff")
    A("s_setprio 0")
    A("s_mov_b64 exec, s[44:45]")
    for m in range(8):
        A(f"buffer_load_dwordx4 {D(m)}, v6, s[32:35], s36 offen nt")
        A(f"buffer_load_dwordx4 {D(m+8)}, v6, s[32:35], s36 offen offset:1280 nt")
        if m < 7: A("s_add_u32 s36, s36, 10240")
    A("s_mov_b64 exec, -1")
    A("s_setprio 3")
    stamp(7)
    A("s_waitcnt vmcnt(0)")
    stamp(8)
    gemv(16, lambda j: (P0, j))
    A.label("L_fpub")
    tag_put(ACC)
    A("s_mov_b64 exec, 0x03ff03ff")
    A(f"global_store_dwordx4 v7, v[{ACC}:{ACC+3}], s[26:27] {SC}")
    A("s_mov_b64 exec, -1")
    stamp(9)
    A("s_branch L_end")
    A.label("L_cd")
    A("s_setprio 3")
    A("v_lshrrev_b32 v1, 4, v0")
    A("s_cmp_eq_u32 s3, 2")
    A("s_cbranch_scc1 L_cd1")
    A("v_subrev_u32 v4, 32, v0")
    A("v_ashrrev_i32 v4, 31, v4")
    A("v_lshlrev_b32 v5, 2, v0")
    A("ds_write_b32 v5, v4")
    if prefetch:
        A("s_getpc_b64 s[40:41]")
        A.label("L_pc")
        A(f"s_sub_u32 s40, s40, L_pc-{KN}")
        A("s_subb_u32 s41, s41, 0")
        A("s_lshr_b32 s46, s2, 3")
        A("s_mul_i32 s47, s46, 26"); A("s_lshr_b32 s47, s47, 8"); A("s_mul_i32 s47, s47, 10"); A("s_sub_u32 s46, s46, s47")
        A("s_lshl_b32 s46, s46, 10")
        A("v_lshl_add_u32 v6, v0, 4, s46")
        A("global_load_dwordx4 v[8:11], v6, s[40:41]")
    A.label("L_cd1")
    A("s_waitcnt lgkmcnt(0)")
    eload()
    A("s_waitcnt lgkmcnt(0)")
    A("s_barrier")
    stamp(2)
    tag_setup()
    A("s_cmp_eq_u32 s3, 2")
    A("s_cbranch_scc1 L_c")
    A("s_mul_i32 s46, s29, 20480"); A("s_lshl_b32 s47, s28, 4"); A("s_add_u32 s46, s46, s47"); A(f"s_add_u32 s46, s46, {SY+512}")
    A("v_lshl_add_u32 v7, v3, 1, v1"); A("v_lshl_add_u32 v7, v7, 10, s46")
    for t in range(4): A(f"v_mov_b32 v{ACC+t}, 0")
    A("s_cmp_ge_u32 s28, 27"); A("s_cbranch_scc1 L_fpub")
    masks()
    A("s_lshl_b32 s46, s28, 12"); A(f"s_add_u32 s46, s46, {SF}")
    A("v_lshl_add_u32 v5, v0, 4, s46")
    lds_wait(F_B, sleep=2)
    A("s_branch L_ab2")
    A.label("L_c")
    A("v_bfe_u32 v6, v0, 2, 1"); A("v_bfe_u32 v7, v0, 3, 1"); A("v_lshl_add_u32 v6, v6, 1, v7")
    A("s_min_u32 s48, s28, 19")
    A("s_mul_i32 s46, s29, 80"); A("s_lshl_b32 s48, s48, 2"); A("s_add_u32 s46, s46, s48")
    A("v_add_lshl_u32 v6, v6, s46, 1")
    A("global_load_ushort v20, v6, s[4:5]")
    A("v_and_b32 v4, 7, v0")
    A("s_lshl_b32 s46, s28, 7"); A(f"s_add_u32 s46, s46, {ML}")
    A("v_lshl_add_u32 v5, v4, 4, s46")
    lds_wait(F_ML, sleep=4)
    stamp(3)
    l = lab("ml"); d = lab("me")
    A.label(l)
    A(f"global_load_dwordx4 v[160:163], v5, s[26:27] {SC}")
    A("s_waitcnt vmcnt(0)")
    A(f"v_bitop3_b32 v164, v161, v163, v{VT} bitop3:0x7e")
    A("v_cmp_ne_u32 vcc, 0, v164")
    loop_tail(l, d, 4)
    stamp(4)
    def red8(v, op):
        A(f"{op}_dpp v{v}, v{v}, v{v} quad_perm:[1,0,3,2] {DPPF}")
        A(f"{op}_dpp v{v}, v{v}, v{v} quad_perm:[2,3,0,1] {DPPF}")
        A(f"{op}_dpp v{v}, v{v}, v{v} row_half_mirror {DPPF}")
    A("v_mov_b32 v166, v160")
    red8(166, "v_max_f32")
    A("v_sub_f32 v160, v160, v166")
    A("v_exp_f32 v160, v160")
    A("v_mul_f32 v162, v162, v160")
    red8(162, "v_add_f32")
    A("v_rcp_f32 v162, v162")
    A("v_lshlrev_b32 v4, 2, v4")
    A("v_mul_f32 v160, v160, v162")
    A(f"ds_write_b32 v4, v160 offset:{L_SC}")
    lds_set(F_SC)
    A("s_cmp_ge_u32 s28, 20")
    A("s_cbranch_scc1 L_end")
    A("v_lshlrev_b32 v20, 16, v20")
    A("s_mul_i32 s46, s29, 20"); A("s_add_u32 s46, s46, s28"); A("s_lshl_b32 s46, s46, 10"); A(f"s_add_u32 s46, s46, {SY}")
    A("v_lshl_add_u32 v5, v0, 4, s46")
    lds_wait(F_O, sleep=2)
    stamp(5)
    l = lab("sy"); d = lab("sz")
    A.label(l)
    A(f"global_load_dwordx4 v[8:11], v5, s[26:27] {SC}")
    A("s_waitcnt vmcnt(0)")
    tag_check(8, 4, 12, 13)
    loop_tail(l, d, 0)
    stamp(6)
    A("v_add_f32_dpp v8, v8, v8 row_ror:8 row_mask:0xf bank_mask:0x3")
    A("v_add_f32_dpp v10, v10, v10 row_ror:8 row_mask:0xf bank_mask:0x3")
    A("v_add_f32_dpp v8, v9, v9 row_ror:8 row_mask:0xf bank_mask:0xc")
    A("v_add_f32_dpp v10, v11, v11 row_ror:8 row_mask:0xf bank_mask:0xc")
    A("v_add_f32_dpp v8, v8, v8 row_half_mirror row_mask:0xf bank_mask:0x5")
    A("v_add_f32_dpp v8, v10, v10 row_half_mirror row_mask:0xf bank_mask:0xa")
    A(f"v_add_f32_dpp v8, v8, v8 quad_perm:[2,3,0,1] {DPPF}")
    A(f"v_add_f32_dpp v8, v8, v8 quad_perm:[1,0,3,2] {DPPF}")
    A("v_mov_b32 v9, v8")
    A("v_permlane16_swap_b32 v8, v9")
    A("v_add_f32 v8, v8, v9")
    A("v_mov_b32 v9, v8")
    A("v_permlane32_swap_b32 v8, v9")
    bf16r(8, 8); bf16r(9, 9)
    silu(9, 9, 10); bf16r(9, 9)
    A("v_mul_f32 v8, v8, v9"); bf16r(8, 8)
    A("v_add_f32 v8, v8, v20")
    A("v_cvt_pk_bf16_f32 v8, v8, v8")
    A("s_mov_b64 exec, 0x1111")
    A("global_store_short v6, v8, s[22:23]")
    A("s_cmp_eq_u32 s2, 0")
    A("s_cbranch_scc0 L_c9")
    A(f"v_mov_b32 v9, {EP}")
    A("s_mov_b64 exec, 1")
    A(f"global_store_dword v9, v{VT}, s[26:27]")
    A.label("L_c9")
    A("s_mov_b64 exec, -1")
    stamp(7)
    A.label("L_end")
    if stamps:
        A("s_memrealtime s[84:85]")
        A("s_waitcnt vmcnt(0) lgkmcnt(0)")
        A("s_mul_i32 s46, s2, 12"); A("s_add_u32 s46, s46, s3"); A("s_lshl_b32 s46, s46, 6"); A("s_add_u32 s46, s46, 0x20000000")
        A("v_mov_b32 v4, s46")
        for k in range(11): A(f"v_mov_b32 v{8+k}, s{64+2*k}")
        A("v_mov_b32 v19, s38")
        A("s_mov_b64 exec, 1")
        for q in range(3): A(f"global_store_dwordx4 v4, v[{8+4*q}:{11+4*q}], s[26:27] offset:{16*q} nt")
    A.label("L_exit")
    A("s_endpgm")
    tail = ['.section .rodata,"a"', ".p2align 6", f".amdhsa_kernel {KN}", "  .amdhsa_next_free_vgpr 168",
            "  .amdhsa_next_free_sgpr 96", "  .amdhsa_accum_offset 168", "  .amdhsa_group_segment_fixed_size 0",
            "  .amdhsa_kernarg_size 96", "  .amdhsa_user_sgpr_count 2", "  .amdhsa_user_sgpr_kernarg_segment_ptr 1",
            "  .amdhsa_system_sgpr_workgroup_id_x 1", ".end_amdhsa_kernel"]
    return "\n".join(hdr) + "\n" + A.finish() + "\n".join(tail) + "\n"

if __name__ == "__main__":
    d = "code"
    open(d + "/exp/k3.s", "w").write(gen())
    open(d + "/exp/k3_ts.s", "w").write(gen(stamps=True))
```

```python
import sys, os
sys.path.insert(0, os.path.dirname(os.path.abspath(__file__)))
from asmlib import Asm
import struct
KN = "recurrent_scan__sliding_block_cached__swiglu_ffn__decode_kernel"
def f2u(x): return struct.unpack("<I", struct.pack("<f", x))[0]
def H(x): return "0x%08x" % (x & 0xffffffff)

SQ, SF, SO, ML, SY, EP = 0x0, 0x20000, 0x40000, 0x60000, 0x80000, 0x61000
L_MX, L_LS, F_Q, F_P, TK_O, TK_Y, F_O, F_B, F_ML, F_SC, F_X = 0x0, 0x40, 0x88, 0x90, 0xa0, 0xa4, 0xa8, 0xac, 0xb0, 0xb4, 0xb8
L_Q, L_P, L_SC, L_O, L_Y = 0x100, 0x200, 0xa00, 0x1000, 0x2000
LDS_BYTES = 0x3000
LOG2E = 1.4426950408889634
T0, T1, T2 = 6, 7, 10

def gen(stamps=False, hmul=37, kpre=4, prefetch=True, SCM="sc1 nt", SCT="sc1", SCL="sc1 nt", SPIN=1 << 17, fast1=True):
    A = Asm()
    uid = [0]
    def lab(p):
        uid[0] += 1
        return f"L_{p}{uid[0]}"
    def stamp(k):
        if stamps: A(f"s_memrealtime s[{64+2*k}:{65+2*k}]")
    def D(j): return f"v[{8+4*j}:{11+4*j}]"
    VM, P0, P1, VT, ACC, A0, A1 = 136, 140, 141, 143, 144, 148, 152
    DPPF = "row_mask:0xf bank_mask:0xf"
    def bf16r(dst, src):
        A(f"v_cvt_pk_bf16_f32 v{dst}, v{src}, v{src}")
        A(f"v_and_b32 v{dst}, 0xffff0000, v{dst}")
    def loop_tail(l, d, sleep):
        A(f"s_cbranch_vccz {d}")
        if sleep: A(f"s_sleep {sleep}")
        A("s_sub_u32 s38, s38, 1")
        A(f"s_cbranch_scc0 {l}"); A("s_branch L_end")
        A.label(d)
    def lds_wait(off, extra="", sleep=1, vt=156, addr=2, bad="0"):
        l = lab("lw"); d = lab("ld")
        A.label(l)
        A(f"ds_read_b32 v{vt}, v{addr} offset:{off}")
        if extra: A(extra)
        A("s_waitcnt lgkmcnt(0)")
        A(f"v_cmp_eq_u32 vcc, {bad}, v{vt}")
        loop_tail(l, d, sleep)
    def lds_set(off, vt=157):
        A(f"v_mov_b32 v{vt}, 1")
        A(f"ds_write_b32 v2, v{vt} offset:{off}")
    def tag_setup(tput=None, tchk=None):
        A("s_add_u32 s57, s56, 1")
        if tput: A(f"s_movk_i32 s58, {(1 << tput) - 1}")
        if tchk: A(f"s_movk_i32 s59, {-(1 << tchk) & 0xffff}")
        A(f"v_mov_b32 v{VT}, s57")
    def tag_put(r, n=4):
        for t in range(n): A(f"v_bfi_b32 v{r+t}, s58, v{VT}, v{r+t}")
    def tag_check(r, n, t1, t2, T, vmid=None):
        A(f"v_bitop3_b32 v{t1}, v{r}, v{r+1}, v{VT} bitop3:0x7e")
        for k in range(1, n // 2):
            A(f"v_bitop3_b32 v{t2}, v{r+2*k}, v{r+2*k+1}, v{VT} bitop3:0x7e")
            A(f"v_or_b32 v{t1}, v{t1}, v{t2}")
        A(f"v_and_b32 v{t1}, {(1 << T) - 1}, v{t1}")
        A(f"v_cmp_ne_u32 vcc, 0, v{t1}")
        mid = f"v{vmid}" if vmid else str(1 << (T - 1))
        for k in range(n): A(f"v_and_or_b32 v{r+k}, v{r+k}, s59, {mid}")
    def masks():
        A("v_and_b32 v156, 1, v3"); A("v_lshlrev_b32 v156, 4, v156"); A("v_mov_b32 v157, 0xffff")
        A("v_lshlrev_b32 v157, v156, v157"); A("v_lshrrev_b32 v156, 1, v3")
        for u in range(4): A(f"v_cmp_eq_u32 s[{48+2*u}:{49+2*u}], {u}, v156")
        for u in range(4): A(f"v_cndmask_b32 v{VM+u}, 0, v157, s[{48+2*u}:{49+2*u}]")
    def abuild(dst, preg, k):
        for u in range(4):
            A(f"v_and_b32_dpp v{dst+u}, v{preg}, v{VM+u} row_newbcast:{k} {DPPF}")
    def gemv(n, src, waits=None):
        abuild(A0, *src(0))
        for j in range(n):
            cur = A0 if j % 2 == 0 else A1
            nxt = A1 if j % 2 == 0 else A0
            if j + 1 < n: abuild(nxt, *src(j + 1))
            if waits is not None and waits(j) is not None: A(f"s_waitcnt vmcnt({waits(j)})")
            c = "0" if j == 0 else f"v[{ACC}:{ACC+3}]"
            A(f"v_mfma_f32_16x16x32_bf16 v[{ACC}:{ACC+3}], v[{cur}:{cur+3}], {D(j)}, {c}")
    def rowsum(v, op="v_add_f32"):
        for k in (8, 4, 2, 1):
            A(f"{op}_dpp v{v}, v{v}, v{v} row_ror:{k} {DPPF}")
    def wavesum_to_s(v, s):
        rowsum(v)
        A(f"v_add_f32_dpp v{v}, v{v}, v{v} row_bcast:15 row_mask:0xa bank_mask:0xf")
        A(f"v_add_f32_dpp v{v}, v{v}, v{v} row_bcast:31 row_mask:0xc bank_mask:0xf")
        A(f"v_readlane_b32 s{s}, v{v}, 63")
    def combine_setup():
        A("s_lshl_b32 s46, s31, 10")
        A("v_add_u32 v5, s46, v1")
        A("v_mov_b32 v6, 1")
    def combine(lbase, tk, endlab, extra=None):
        A(f"ds_write_b128 v5, v[{ACC}:{ACC+3}] offset:{lbase}")
        A("s_mov_b64 exec, 1")
        A(f"ds_add_rtn_u32 v6, v2, v6 offset:{tk}")
        A("s_mov_b64 exec, -1")
        A(f"ds_read_b128 v[156:159], v1 offset:{lbase}")
        A(f"ds_read_b128 v[160:163], v1 offset:{lbase+1024}")
        A(f"ds_read_b128 v[164:167], v1 offset:{lbase+2048}")
        A(f"ds_read_b128 v[148:151], v1 offset:{lbase+3072}")
        if extra: A(extra)
        A("s_waitcnt lgkmcnt(0)")
        A("v_readfirstlane_b32 s46, v6")
        A("v_pk_add_f32 v[156:157], v[156:157], v[160:161]")
        A("v_pk_add_f32 v[158:159], v[158:159], v[162:163]")
        A("v_pk_add_f32 v[164:165], v[164:165], v[148:149]")
        A("v_pk_add_f32 v[166:167], v[166:167], v[150:151]")
        A("s_cmp_eq_u32 s46, 3")
        A(f"s_cbranch_scc0 {endlab}")
        A("v_pk_add_f32 v[156:157], v[156:157], v[164:165]")
        A("v_pk_add_f32 v[158:159], v[158:159], v[166:167]")
        tag_put(156)
    def silu(dst, z, t):
        A(f"v_mul_f32 v{t}, {H(f2u(-LOG2E))}, v{z}")
        A(f"v_exp_f32 v{t}, v{t}")
        A(f"v_add_f32 v{t}, 1.0, v{t}")
        A(f"v_rcp_f32 v{t}, v{t}")
        A(f"v_mul_f32 v{dst}, v{z}, v{t}")
    def eload():
        A(f"s_load_dword s56, s[26:27], {EP}")

    hdr = [f"; @launch grid=(256,1,1) block=(768,1,1) lds={LDS_BYTES}",
           '.amdgcn_target "amdgcn-amd-amdhsa--gfx950"', ".text", f".globl {KN}", ".p2align 8", f".type {KN},@function"]
    A.label(KN)
    stamp(0)
    A("s_load_dwordx16 s[4:19], s[0:1], 0")
    A("s_load_dwordx8 s[20:27], s[0:1], 64")
    A("s_cmp_ge_u32 s2, 256")
    A("s_cbranch_scc1 L_exit")
    A("v_lshrrev_b32 v1, 6, v0")
    A("v_and_b32 v0, 63, v0")
    A("v_readfirstlane_b32 s3, v1")
    A("v_mov_b32 v2, 0")
    A("v_and_b32 v3, 15, v0")
    A("s_and_b32 s28, s2, 31")
    A("s_lshr_b32 s29, s2, 5")
    A(f"s_mov_b32 s38, {SPIN}")
    A("s_lshl_b32 s30, s28, 3")
    A("s_add_u32 s30, s30, s29")
    A("s_cmp_lt_u32 s3, 2")
    A("s_cbranch_scc1 L_ab")
    A("s_cmp_lt_u32 s3, 4")
    A("s_cbranch_scc1 L_cd")
    A("s_and_b32 s31, s3, 3")
    A("s_lshl_b32 s36, s28, 23")
    A("s_lshl_b32 s37, s29, 17")
    A("s_add_u32 s36, s36, s37")
    A("s_add_u32 s36, s36, 0x700000")
    A(f"s_mul_i32 s37, s2, {hmul}")
    A("s_and_b32 s37, s37, 127")
    A("s_xor_b32 s37, s37, s31")
    A("s_lshl_b32 s37, s37, 10")
    A("s_add_u32 s36, s36, s37")
    A("v_lshlrev_b32 v1, 4, v0")
    A("s_mov_b32 s34, 0x10000000")
    A("s_mov_b32 s35, 0x20000")
    A("s_setprio 2")
    A("s_cmp_lt_u32 s3, 8")
    A("s_cbranch_scc1 L_kv1")
    A("s_setprio 1")
    A("s_barrier")
    A.label("L_kv1")
    A("s_waitcnt lgkmcnt(0)")
    A("s_cselect_b32 s32, s6, s8")
    A("s_cselect_b32 s33, s7, s9")
    stamp(1)
    for j in range(32):
        if j == kpre:
            eload()
            A("s_cmp_lt_u32 s3, 8")
            A("s_cbranch_scc0 L_kv2")
            A("s_barrier")
            A.label("L_kv2")
        if j == 0:
            A(f"buffer_load_dwordx4 {D(j)}, v1, s[32:35], s36 offen nt")
        else:
            A(f"s_xor_b32 s37, s36, {j << 12}")
            A(f"buffer_load_dwordx4 {D(j)}, v1, s[32:35], s37 offen nt")
    stamp(2)
    masks()
    A("s_waitcnt lgkmcnt(0)")
    tag_setup(T1, T1)
    A("s_cmp_lt_u32 s3, 8")
    A("s_cbranch_scc1 L_k")
    A("s_lshl_b32 s46, s31, 9")
    A("v_lshl_add_u32 v4, v0, 3, s46")
    A("s_lshl_b32 s46, s31, 2")
    A("v_mov_b32 v5, s46")
    lds_wait(F_P, extra=f"ds_read_b64 v[{P0}:{P1}], v4 offset:{L_P}", addr=5)
    stamp(3)
    A("s_setprio 3")
    A("s_lshl_b32 s47, s30, 9")
    A(f"s_add_u32 s47, s47, {SO}")
    A("v_add_u32 v7, s47, v1")
    combine_setup()
    gemv(32, lambda j: (P0 + j // 16, j % 16), waits=lambda j: 31 - j)
    stamp(4)
    combine(L_O, TK_O, "L_end", extra=f"ds_read_b32 v4, v2 offset:{F_X}")
    A("v_cmp_eq_u32 vcc, 0, v4")
    A("s_mov_b32 exec_hi, 0")
    if fast1:
        A("s_cbranch_vccnz L_vslow")
        A(f"global_store_dwordx4 v7, v[156:159], s[26:27]")
        stamp(5)
        A("s_branch L_end")
        A.label("L_vslow")
    A(f"global_store_dwordx4 v7, v[156:159], s[26:27] {SCT}")
    stamp(5)
    A("s_branch L_end")
    A.label("L_k")
    A("v_lshlrev_b32 v4, 4, v3")
    A("s_mov_b32 s40, 0xcccccccc"); A("s_mov_b32 s41, 0xcccccccc")
    A("s_mov_b32 s42, 0xaaaaaaaa"); A("s_mov_b32 s43, 0xaaaaaaaa")
    lds_wait(F_Q, extra=f"ds_read_b128 v[160:163], v4 offset:{L_Q}", sleep=2)
    stamp(3)
    A("s_setprio 3")
    def bitrev4(x): return ((x & 1) << 3) | ((x & 2) << 1) | ((x & 4) >> 1) | ((x & 8) >> 3)
    for half in range(2):
        A(f"s_waitcnt vmcnt({16 if half == 0 else 0})")
        for j4 in range(4):
            js = [16 * half + 4 * j4 + t for t in range(4)]
            for k in range(4):
                for j in js:
                    b = 8 + 4 * j
                    if k == 0: A(f"v_dot2_f32_bf16 v{b}, v{b}, v160, 0")
                    else: A(f"v_dot2c_f32_bf16 v{b}, v{b+k}, v{160+k}")
        a = [8 + 4 * (16 * half + bitrev4(m)) for m in range(16)]
        for k in range(8): A(f"v_add_f32_dpp v{a[2*k]}, v{a[2*k]}, v{a[2*k]} row_ror:8 row_mask:0xf bank_mask:0x3")
        for k in range(8): A(f"v_add_f32_dpp v{a[2*k]}, v{a[2*k+1]}, v{a[2*k+1]} row_ror:8 row_mask:0xf bank_mask:0xc")
        b = [a[2*k] for k in range(8)]
        for k in range(4): A(f"v_add_f32_dpp v{b[2*k]}, v{b[2*k]}, v{b[2*k]} row_half_mirror row_mask:0xf bank_mask:0x5")
        for k in range(4): A(f"v_add_f32_dpp v{b[2*k]}, v{b[2*k+1]}, v{b[2*k+1]} row_half_mirror row_mask:0xf bank_mask:0xa")
        c = [b[2*k] for k in range(4)]
        for k in range(4): A(f"v_add_f32_dpp v{c[k]}, v{c[k]}, v{c[k]} quad_perm:[2,3,0,1] {DPPF}")
        for k in range(2): A(f"v_cndmask_b32 v{c[2*k]}, v{c[2*k]}, v{c[2*k+1]}, s[40:41]")
        dd = [c[0], c[2]]
        for k in range(2): A(f"v_add_f32_dpp v{dd[k]}, v{dd[k]}, v{dd[k]} quad_perm:[1,0,3,2] {DPPF}")
        A(f"v_cndmask_b32 v{164+half}, v{dd[0]}, v{dd[1]}, s[42:43]")
    A("v_cvt_pk_bf16_f32 v166, v164, v165")
    A("v_lshlrev_b32 v164, 16, v166"); A("v_and_b32 v165, 0xffff0000, v166")
    A(f"v_mul_f32 v164, {H(f2u(128 ** -0.5))}, v164"); A(f"v_mul_f32 v165, {H(f2u(128 ** -0.5))}, v165")
    A("v_cvt_pk_bf16_f32 v166, v164, v165")
    A("v_lshlrev_b32 v164, 16, v166"); A("v_and_b32 v165, 0xffff0000, v166")
    A(f"v_mul_f32 v164, {H(f2u(LOG2E))}, v164"); A(f"v_mul_f32 v165, {H(f2u(LOG2E))}, v165")
    A("v_max_f32 v160, v164, v165")
    rowsum(160, "v_max_f32")
    A("v_lshrrev_b32 v5, 4, v0"); A("s_lshl_b32 s46, s31, 4"); A("v_lshl_add_u32 v5, v5, 2, s46")
    A("v_lshlrev_b32 v6, 2, v3")
    A(f"ds_write_b32 v5, v160 offset:{L_MX}")
    lds_wait(L_MX, sleep=0, vt=160, addr=6, bad="-1")
    rowsum(160, "v_max_f32")
    A("v_sub_f32 v164, v164, v160"); A("v_sub_f32 v165, v165, v160")
    A("v_exp_f32 v164, v164"); A("v_exp_f32 v165, v165")
    A("s_lshl_b32 s46, s31, 9")
    A("v_lshl_add_u32 v4, v0, 3, s46")
    A(f"v_cvt_pk_bf16_f32 v{P0}, v164, v164"); A(f"v_cvt_pk_bf16_f32 v{P1}, v165, v165")
    A("v_add_f32 v162, v164, v165")
    A("s_lshl_b32 s46, s31, 2")
    A("v_mov_b32 v7, s46"); A("v_mov_b32 v157, 1")
    A(f"ds_write_b64 v4, v[{P0}:{P1}] offset:{L_P}")
    A(f"ds_write_b32 v7, v157 offset:{F_P}")
    rowsum(162)
    A(f"ds_write_b32 v5, v162 offset:{L_LS}")
    stamp(4)
    A("s_cmp_eq_u32 s31, 0")
    A("s_cbranch_scc0 L_k2")
    lds_wait(L_LS, sleep=0, vt=162, addr=6, bad="-1")
    rowsum(162)
    A("s_lshl_b32 s46, s30, 4"); A(f"s_add_u32 s46, s46, {ML}"); A("v_mov_b32 v7, s46")
    A("s_getreg_b32 s46, hwreg(HW_REG_XCC_ID, 0, 4)"); A("s_lshl_b32 s46, s46, 28")
    A(f"v_mov_b32 v161, v{VT}"); A(f"v_xor_b32 v163, s46, v{VT}")
    A("s_mov_b64 exec, 1")
    A(f"global_store_dwordx4 v7, v[160:163], s[26:27] {SCM}")
    A("s_mov_b64 exec, -1")
    A("s_waitcnt vmcnt(0)")
    lds_set(F_ML)
    A.label("L_k2")
    A("v_and_b32 v4, 7, v0")
    A("s_lshl_b32 s46, s28, 12"); A("s_lshl_b32 s47, s31, 7"); A("s_add_u32 s46, s46, s47"); A(f"s_add_u32 s46, s46, {SO}")
    A("v_lshrrev_b32 v40, 3, v0"); A("v_lshlrev_b32 v40, 4, v40"); A("v_lshl_add_u32 v40, v4, 9, v40"); A("v_add_u32 v40, s46, v40")
    A("s_lshl_b32 s46, s2, 9"); A(f"s_add_u32 s46, s46, {SY}"); A("v_add_u32 v7, s46, v1")
    A("v_lshlrev_b32 v4, 2, v4")
    A(f"s_movk_i32 s58, {(1 << T2) - 1}")
    stamp(5)
    A("s_mov_b32 s32, s12"); A("s_mov_b32 s33, s13"); A(f"s_mov_b32 s34, {4096*640*2}")
    A("s_lshl_b32 s46, s28, 7"); A("s_and_b32 s47, s31, 1"); A("s_lshl_b32 s47, s47, 6"); A("s_add_u32 s46, s46, s47")
    A("s_lshr_b32 s47, s31, 1"); A("s_lshl_b32 s47, s47, 2"); A("s_add_u32 s46, s46, s47")
    A("s_mul_i32 s36, s46, 1280"); A("s_mul_i32 s47, s29, 160"); A("s_add_u32 s36, s36, s47")
    A("s_add_u32 s37, s36, 10240")
    A("v_lshrrev_b32 v41, 4, v0"); A("v_mul_u32_u24 v41, 20480, v41"); A("v_lshl_add_u32 v41, v3, 4, v41")
    combine_setup()
    A("s_mov_b32 s44, 0x03ff03ff"); A("s_mov_b32 s45, 0x03ff03ff")
    A("s_setprio 0")
    A("s_mov_b64 exec, s[44:45]")
    for k in range(8):
        b1, b2, b3 = k & 1, (k >> 1) & 1, k >> 2
        A(f"buffer_load_dwordx4 {D(k)}, v41, s[32:35], s{37 if b3 else 36} offen offset:{(2*b1+b2)*1280} nt")
    A("s_mov_b64 exec, -1")
    A("s_setprio 3")
    stamp(6)
    l = lab("so"); d = lab("se")
    A.label(l)
    A(f"global_load_dwordx4 v[160:163], v40, s[26:27] {SCL}")
    A(f"ds_read_b32 v156, v2 offset:{F_SC}")
    A(f"ds_read_b32 v142, v4 offset:{L_SC}")
    A("s_waitcnt vmcnt(0) lgkmcnt(0)")
    A("v_cmp_eq_u32 s[46:47], 0, v156")
    tag_check(160, 4, 164, 165, T1)
    A("s_or_b64 vcc, vcc, s[46:47]")
    loop_tail(l, d, 0)
    stamp(8)
    for t in range(4): A(f"v_mul_f32 v{160+t}, v142, v{160+t}")
    A("v_add_f32_dpp v160, v160, v160 row_half_mirror row_mask:0xf bank_mask:0x5")
    A("v_add_f32_dpp v162, v162, v162 row_half_mirror row_mask:0xf bank_mask:0x5")
    A("v_add_f32_dpp v160, v161, v161 row_half_mirror row_mask:0xf bank_mask:0xa")
    A("v_add_f32_dpp v162, v163, v163 row_half_mirror row_mask:0xf bank_mask:0xa")
    A(f"v_add_f32_dpp v160, v160, v160 quad_perm:[2,3,0,1] {DPPF}")
    A(f"v_add_f32_dpp v162, v162, v162 quad_perm:[2,3,0,1] {DPPF}")
    A("v_cndmask_b32 v160, v160, v162, s[40:41]")
    A(f"v_add_f32_dpp v160, v160, v160 quad_perm:[1,0,3,2] {DPPF}")
    A(f"v_cvt_pk_bf16_f32 v{P0}, v160, v160")
    gemv(8, lambda j: (P0, 2 * j))
    combine(L_Y, TK_Y, "L_end")
    A("s_mov_b32 exec_hi, 0")
    A(f"global_store_dwordx4 v7, v[156:159], s[26:27] {SCT}")
    stamp(9)
    A("s_branch L_end")
    A.label("L_ab")
    A("s_setprio 3")
    A("s_cmp_eq_u32 s3, 1"); A("s_cselect_b32 s46, 27, 64"); A("s_cmp_ge_u32 s28, s46"); A("s_cbranch_scc1 L_exit")
    A("v_lshrrev_b32 v1, 4, v0")
    A("v_mul_u32_u24 v4, 20, v0")
    A("v_mul_u32_u24 v5, 20, v1")
    A("s_mul_i32 s46, s29, 80")
    A("v_add_u32 v5, s46, v5")
    A("v_add_lshl_u32 v6, v5, v3, 1")
    A("v_and_b32 v7, 3, v3"); A("v_add_lshl_u32 v7, v5, v7, 1")
    A("s_waitcnt lgkmcnt(0)")
    stamp(1)
    eload()
    A("global_load_dwordx4 v[88:91], v4, s[4:5]")
    A("global_load_dword v92, v4, s[4:5] offset:16")
    A("global_load_ushort v93, v6, s[4:5]")
    A("global_load_ushort v94, v7, s[4:5] offset:32")
    A("s_add_u32 s48, s10, 128"); A("s_addc_u32 s49, s11, 0")
    A("s_cmp_eq_u32 s3, 0")
    A("s_cselect_b32 s50, s10, s16"); A("s_cselect_b32 s51, s11, s17")
    A("s_cselect_b32 s48, s48, s18"); A("s_cselect_b32 s49, s49, s19")
    A("s_movk_i32 s44, 3456"); A("s_cselect_b32 s44, 8192, s44"); A("s_mov_b32 s45, 0")
    A("s_cselect_b32 s46, 8, 7"); A("s_lshl_b32 s46, s28, s46")
    A("v_mul_lo_u32 v6, v5, s44")
    A("v_and_b32 v7, 7, v3"); A("v_lshl_add_u32 v6, v7, 4, v6"); A("v_add_u32 v6, s46, v6"); A("v_mov_b32 v7, 0")
    A("v_cmp_gt_u32 vcc, 8, v3")
    A("v_mov_b32 v4, s48"); A("v_mov_b32 v5, s49"); A("v_mov_b32 v95, s50"); A("v_mov_b32 v96, s51")
    A("v_cndmask_b32 v4, v4, v95, vcc"); A("v_cndmask_b32 v5, v5, v96, vcc")
    A("v_lshl_add_u64 v[4:5], v[6:7], 0, v[4:5]")
    for n in range(20):
        A(f"global_load_dwordx4 {D(n)}, v[4:5], off nt")
        if n < 19: A("v_lshl_add_u64 v[4:5], v[4:5], 0, s[44:45]")
    A("s_waitcnt lgkmcnt(0)")
    A("s_barrier")
    stamp(2)
    masks()
    tag_setup(T0, T0)
    A("s_waitcnt vmcnt(20)")
    for k in range(5):
        A(f"v_lshlrev_b32 v{100+2*k}, 16, v{88+k}"); A(f"v_and_b32 v{101+2*k}, 0xffff0000, v{88+k}")
    A("v_add_f32 v110, v100, v101")
    for k in range(2, 10): A(f"v_add_f32 v110, v110, v{100+k}")
    wavesum_to_s(110, 46)
    A(f"v_mov_b32 v111, {H(f2u(1.0/640))}")
    A("v_mul_f32 v112, s46, v111")
    for k in range(10): A(f"v_sub_f32 v{100+k}, v{100+k}, v112")
    A("v_mul_f32 v110, v100, v100")
    for k in range(1, 10): A(f"v_fmac_f32 v110, v{100+k}, v{100+k}")
    wavesum_to_s(110, 46)
    A("v_mul_f32 v113, s46, v111")
    bf16r(112, 112); bf16r(113, 113)
    A(f"v_add_f32 v113, {H(f2u(1e-5))}, v113"); bf16r(113, 113)
    A("v_sqrt_f32 v113, v113"); bf16r(113, 113)
    A("v_rcp_f32 v114, v113")
    for k in range(2):
        x = 93 + k
        A(f"v_lshlrev_b32 v{x}, 16, v{x}"); A(f"v_sub_f32 v{x}, v{x}, v112"); bf16r(x, x)
        A(f"v_mul_f32 v115, v{x}, v114"); A(f"v_fma_f32 v116, -v115, v113, v{x}"); A("v_fmac_f32 v115, v116, v114")
        A(f"v_cvt_pk_bf16_f32 v{P0+k}, v115, v115")
    stamp(3)
    A("s_lshl_b32 s39, s3, 17")
    A("s_lshl_b32 s46, s30, 9"); A("s_add_u32 s46, s46, s39")
    A("v_lshl_add_u32 v4, v0, 4, s46")
    A("s_lshl_b32 s46, s28, 12"); A("s_add_u32 s46, s46, s39")
    A("v_lshl_add_u32 v5, v0, 4, s46")
    gemv(20, lambda j: (P0 + j // 16, j % 16), waits=lambda j: 19 - j)
    tag_put(ACC)
    A("s_mov_b32 exec_hi, 0")
    A(f"global_store_dwordx4 v4, v[{ACC}:{ACC+3}], s[26:27] {SCM}")
    A("s_mov_b64 exec, -1")
    stamp(4)
    A("s_waitcnt vmcnt(0)")
    A("s_cmp_eq_u32 s3, 0")
    A("s_cbranch_scc1 L_ab2")
    lds_set(F_B)
    A("s_branch L_end")
    A.label("L_ab2")
    stamp(5)
    l = lab("ga"); d = lab("ge")
    A.label(l)
    for k in range(4): A(f"global_load_dwordx4 v[{96+4*k}:{99+4*k}], v5, s[26:27] offset:{1024*k} {SCM}")
    A("s_waitcnt vmcnt(0)")
    tag_check(96, 16, 112, 113, T0)
    loop_tail(l, d, 4)
    stamp(6)
    for k in range(1, 4):
        A(f"v_pk_add_f32 v[96:97], v[96:97], v[{96+4*k}:{97+4*k}]")
        A(f"v_pk_add_f32 v[98:99], v[98:99], v[{98+4*k}:{99+4*k}]")
    A("v_permlane32_swap_b32 v96, v98")
    A("v_permlane32_swap_b32 v97, v99")
    A("v_add_f32 v96, v96, v98"); A("v_add_f32 v97, v97, v99")
    A("s_cmp_eq_u32 s3, 0")
    A("s_cbranch_scc0 L_b")
    A("v_cvt_pk_bf16_f32 v96, v96, v97")
    A("v_and_b32 v6, 1, v1"); A("v_lshlrev_b32 v6, 3, v6"); A("v_lshl_add_u32 v6, v3, 4, v6")
    A("v_lshrrev_b32 v7, 1, v1"); A("v_lshl_add_u32 v6, v7, 2, v6")
    A(f"ds_write_b32 v6, v96 offset:{L_Q}")
    lds_set(F_Q)
    stamp(7)
    A("s_branch L_end")
    A.label("L_b")
    A(f"v_mov_b32_dpp v98, v96 row_ror:8 {DPPF}")
    A("v_mov_b32_dpp v96, v97 row_ror:8 row_mask:0xf bank_mask:0xc")
    A("v_mov_b32_dpp v97, v98 quad_perm:[0,1,2,3] row_mask:0xf bank_mask:0x3")
    bf16r(96, 96); bf16r(97, 97)
    silu(96, 96, 98); bf16r(96, 96)
    A("v_mul_f32 v96, v96, v97")
    A(f"v_cvt_pk_bf16_f32 v{P0}, v96, v96")
    stamp(8)
    gemv(16, lambda j: (P0, j))
    A.label("L_fpub")
    tag_put(ACC)
    A("s_mov_b32 exec_hi, 0")
    A(f"global_store_dwordx4 v7, v[{ACC}:{ACC+3}], s[26:27] {SCM}")
    stamp(9)
    A("s_branch L_end")
    A.label("L_cd")
    A("s_setprio 3")
    A("v_lshrrev_b32 v1, 4, v0")
    A("s_cmp_eq_u32 s3, 2")
    A("s_cbranch_scc1 L_cd1")
    A("v_subrev_u32 v4, 32, v0")
    A("v_ashrrev_i32 v4, 31, v4")
    A("v_lshlrev_b32 v5, 2, v0")
    A("ds_write_b32 v5, v4")
    if prefetch:
        A("s_getpc_b64 s[40:41]")
        A.label("L_pc")
        A(f"s_sub_u32 s40, s40, L_pc-{KN}")
        A("s_subb_u32 s41, s41, 0")
        A("s_lshr_b32 s46, s2, 3")
        A("s_mul_i32 s47, s46, 26"); A("s_lshr_b32 s47, s47, 8"); A("s_mul_i32 s47, s47, 10"); A("s_sub_u32 s46, s46, s47")
        A("s_lshl_b32 s46, s46, 10")
        A("v_lshl_add_u32 v6, v0, 4, s46")
        A("global_load_dwordx4 v[120:123], v6, s[40:41]")
    A("s_waitcnt lgkmcnt(0)")
    A("s_cmp_ge_u32 s28, 27"); A("s_cbranch_scc1 L_cd1")
    A("s_mov_b32 s32, s20"); A("s_mov_b32 s33, s21"); A(f"s_mov_b32 s34, {1728*640*2}"); A("s_mov_b32 s35, 0x20000")
    A("s_mul_i32 s36, s28, 81920"); A("s_mul_i32 s47, s29, 160"); A("s_add_u32 s36, s36, s47")
    A("v_and_b32 v6, 1, v1"); A("v_lshlrev_b32 v6, 2, v6"); A("v_and_b32 v4, 2, v1"); A("v_add_u32 v6, v6, v4")
    A("v_mul_u32_u24 v6, 1280, v6"); A("v_lshl_add_u32 v6, v3, 4, v6")
    A("s_mov_b32 s44, 0x03ff03ff"); A("s_mov_b32 s45, 0x03ff03ff")
    A("s_mov_b64 exec, s[44:45]")
    for m in range(8):
        A(f"buffer_load_dwordx4 {D(m)}, v6, s[32:35], s36 offen nt")
        A(f"buffer_load_dwordx4 {D(m+8)}, v6, s[32:35], s36 offen offset:1280 nt")
        if m < 7: A("s_add_u32 s36, s36, 10240")
    A("s_mov_b64 exec, -1")
    A.label("L_cd1")
    A("s_waitcnt lgkmcnt(0)")
    eload()
    A("s_waitcnt lgkmcnt(0)")
    A("s_barrier")
    stamp(2)
    tag_setup(T2, T0)
    A("s_cmp_eq_u32 s3, 2")
    A("s_cbranch_scc1 L_c")
    A("s_lshl_b32 s46, s2, 9"); A(f"s_add_u32 s46, s46, {SY+0x20000}"); A("v_lshl_add_u32 v7, v0, 4, s46")
    for t in range(4): A(f"v_mov_b32 v{ACC+t}, 0")
    A("s_cmp_ge_u32 s28, 27"); A("s_cbranch_scc1 L_fpub")
    masks()
    A("s_lshl_b32 s46, s28, 12"); A(f"s_add_u32 s46, s46, {SF}")
    A("v_lshl_add_u32 v5, v0, 4, s46")
    lds_wait(F_B, sleep=2)
    A("s_branch L_ab2")
    A.label("L_c")
    A(f"s_movk_i32 s59, {-(1 << T2) & 0xffff}")
    A(f"v_mov_b32 v21, {1 << (T2 - 1)}")
    A("s_and_b32 s40, s2, 7"); A("s_lshr_b32 s41, s2, 3"); A("s_min_u32 s42, s41, 19")
    A("v_bfe_u32 v6, v0, 2, 1"); A("v_bfe_u32 v7, v0, 3, 1"); A("v_lshl_add_u32 v6, v6, 1, v7")
    A("s_mul_i32 s46, s40, 80"); A("s_lshl_b32 s48, s42, 2"); A("s_add_u32 s46, s46, s48")
    A("v_add_lshl_u32 v6, v6, s46, 1")
    A("global_load_ushort v20, v6, s[4:5]")
    A("v_and_b32 v4, 7, v0")
    A("s_lshl_b32 s46, s28, 7"); A(f"s_add_u32 s46, s46, {ML}")
    A("v_lshl_add_u32 v5, v4, 4, s46")
    A("s_lshl_b32 s46, s40, 14"); A("s_and_b32 s47, s42, 1"); A("s_lshl_b32 s47, s47, 8"); A("s_add_u32 s46, s46, s47")
    A("s_lshr_b32 s47, s42, 1"); A("s_lshl_b32 s47, s47, 4"); A("s_add_u32 s46, s46, s47"); A(f"s_add_u32 s46, s46, {SY}")
    A("v_and_b32 v22, 31, v0"); A("v_lshl_add_u32 v22, v22, 9, s46"); A("v_add_u32 v23, 0x20000, v22")
    A("s_getreg_b32 s43, hwreg(HW_REG_XCC_ID, 0, 4)"); A("s_lshl_b32 s43, s43, 28"); A("s_xor_b32 s43, s43, s57")
    lds_wait(F_ML, sleep=4)
    stamp(3)
    l = lab("ml"); d = lab("me")
    A.label(l)
    A(f"global_load_dwordx4 v[160:163], v5, s[26:27] {SCM}")
    A("s_waitcnt vmcnt(0)")
    A(f"v_xor_b32 v164, v163, v{VT}"); A("v_lshlrev_b32 v164, 4, v164"); A(f"v_xor_b32 v165, v161, v{VT}"); A("v_or_b32 v164, v164, v165")
    A("v_cmp_ne_u32 vcc, 0, v164")
    loop_tail(l, d, 4)
    stamp(4)
    def red8(v, op):
        A(f"{op}_dpp v{v}, v{v}, v{v} quad_perm:[1,0,3,2] {DPPF}")
        A(f"{op}_dpp v{v}, v{v}, v{v} quad_perm:[2,3,0,1] {DPPF}")
        A(f"{op}_dpp v{v}, v{v}, v{v} row_half_mirror {DPPF}")
    A("v_cmp_ne_u32 vcc, s43, v163")
    A("v_mov_b32 v166, v160")
    red8(166, "v_max_f32")
    A("v_sub_f32 v160, v160, v166")
    A("v_exp_f32 v160, v160")
    A("v_mul_f32 v162, v162, v160")
    red8(162, "v_add_f32")
    A("v_rcp_f32 v162, v162")
    A("v_lshlrev_b32 v4, 2, v4")
    A("v_mul_f32 v160, v160, v162")
    A(f"ds_write_b32 v4, v160 offset:{L_SC}")
    lds_set(F_SC)
    A("s_cbranch_vccnz L_c3")
    A(f"ds_write_b32 v2, v157 offset:{F_X}")
    A.label("L_c3")
    A("s_cmp_ge_u32 s41, 20")
    A("s_cbranch_scc1 L_end")
    A("v_lshlrev_b32 v20, 16, v20")
    A("s_mov_b32 exec_hi, 0")
    A("s_mov_b32 s44, 0")
    l = lab("sy"); d = lab("sz")
    A.label(l)
    A(f"global_load_dwordx4 v[8:11], v23, s[26:27] {SCL}")
    A("s_waitcnt vmcnt(0)")
    tag_check(8, 4, 12, 13, T2, vmid=21)
    loop_tail(l, d, 0)
    stamp(6)
    A("v_add_f32_dpp v8, v8, v8 row_ror:8 row_mask:0xf bank_mask:0x3")
    A("v_add_f32_dpp v10, v10, v10 row_ror:8 row_mask:0xf bank_mask:0x3")
    A("v_add_f32_dpp v8, v9, v9 row_ror:8 row_mask:0xf bank_mask:0xc")
    A("v_add_f32_dpp v10, v11, v11 row_ror:8 row_mask:0xf bank_mask:0xc")
    A("v_add_f32_dpp v8, v8, v8 row_half_mirror row_mask:0xf bank_mask:0x5")
    A("v_add_f32_dpp v8, v10, v10 row_half_mirror row_mask:0xf bank_mask:0xa")
    A(f"v_add_f32_dpp v8, v8, v8 quad_perm:[2,3,0,1] {DPPF}")
    A(f"v_add_f32_dpp v8, v8, v8 quad_perm:[1,0,3,2] {DPPF}")
    A("v_mov_b32 v9, v8")
    A("v_permlane16_swap_b32 v8, v9")
    A("v_add_f32 v8, v8, v9")
    bf16r(8, 8)
    A("s_cmp_eq_u32 s44, 0")
    A("s_cbranch_scc0 L_c5")
    silu(24, 8, 10); bf16r(24, 24)
    A("v_mov_b32 v23, v22")
    A("s_mov_b32 s44, 1")
    stamp(5)
    A(f"s_branch {l}")
    A.label("L_c5")
    A("v_mul_f32 v8, v8, v24"); bf16r(8, 8)
    A("v_add_f32 v8, v8, v20")
    A("v_cvt_pk_bf16_f32 v8, v8, v8")
    A("s_mov_b64 exec, 0x1111")
    A("global_store_short v6, v8, s[22:23]")
    A("s_cmp_eq_u32 s2, 0")
    A("s_cbranch_scc0 L_c9")
    A(f"v_mov_b32 v9, {EP}")
    A("s_mov_b64 exec, 1")
    A(f"global_store_dword v9, v{VT}, s[26:27]")
    A.label("L_c9")
    stamp(7)
    A.label("L_end")
    if stamps:
        A("s_memrealtime s[84:85]")
        A("s_waitcnt vmcnt(0) lgkmcnt(0)")
        A("s_setprio 0")
        A("s_add_u32 s90, s64, 2600")
        A.label("L_hold")
        A("s_sleep 16")
        A("s_memrealtime s[88:89]")
        A("s_waitcnt lgkmcnt(0)")
        A("s_sub_u32 s91, s88, s90")
        A("s_cmp_lt_i32 s91, 0")
        A("s_cbranch_scc1 L_hold")
        A("s_mul_i32 s46, s2, 12"); A("s_add_u32 s46, s46, s3"); A("s_lshl_b32 s46, s46, 6"); A("s_add_u32 s46, s46, 0x20000000")
        A("s_mov_b64 exec, -1")
        A("v_mov_b32 v4, s46")
        for k in range(11): A(f"v_mov_b32 v{8+k}, s{64+2*k}")
        A("v_mov_b32 v19, s38")
        A("s_mov_b64 exec, 1")
        for q in range(3): A(f"global_store_dwordx4 v4, v[{8+4*q}:{11+4*q}], s[26:27] offset:{16*q} nt")
    A.label("L_exit")
    A("s_endpgm")
    tail = ['.section .rodata,"a"', ".p2align 6", f".amdhsa_kernel {KN}", "  .amdhsa_next_free_vgpr 168",
            "  .amdhsa_next_free_sgpr 96", "  .amdhsa_accum_offset 168", "  .amdhsa_group_segment_fixed_size 0",
            "  .amdhsa_kernarg_size 96", "  .amdhsa_user_sgpr_count 2", "  .amdhsa_user_sgpr_kernarg_segment_ptr 1",
            "  .amdhsa_system_sgpr_workgroup_id_x 1", ".end_amdhsa_kernel"]
    return "\n".join(hdr) + "\n" + A.finish() + "\n".join(tail) + "\n"

V = {
 "base": {},
 "scm_sc1": dict(SCM="sc1"),
 "scl_sc1": dict(SCL="sc1"),
 "kpre0": dict(kpre=0),
 "kpre8": dict(kpre=8),
 "nopf": dict(prefetch=False),
 "nofast": dict(fast1=False),
 "hm1": dict(hmul=1),
}
if __name__ == "__main__":
    d = "code"
    open(d + "/exp/k4.s", "w").write(gen())
    open(d + "/exp/k4_ts.s", "w").write(gen(stamps=True))
    for k, v in V.items(): open(d + f"/exp/v4_{k}.s", "w").write(gen(stamps=True, **v))
```

```python
import sys, os
sys.path.insert(0, os.path.dirname(os.path.abspath(__file__)))
from asmlib import Asm
import struct
KN = "recurrent_scan__sliding_block_cached__swiglu_ffn__decode_kernel"
def f2u(x): return struct.unpack("<I", struct.pack("<f", x))[0]
def H(x): return "0x%08x" % (x & 0xffffffff)

SQ, SF, SO, ML, SY, EP = 0x0, 0x20000, 0x40000, 0x60000, 0x80000, 0x61000
L_MX, L_LS, F_Q, F_X, F_P, TK_O, TK_Y, F_B, F_F, F_W = 0x0, 0x40, 0x88, 0x8c, 0x90, 0xa0, 0xa4, 0xac, 0xb0, 0xc0
L_Q, L_P, L_O, L_Y = 0x100, 0x200, 0x1000, 0x2000
LDS_BYTES = 0x3000
LOG2E = 1.4426950408889634
T0, T1, T2 = 6, 7, 10

def gen(stamps=False, hmul=37, kpre=4, prefetch=False, SCX="sc1", SCL="sc1 nt", SCY="sc1", SPIN=1 << 20, RETRY=3, ksleep=0, csleep=0, plain0=True, prew=False, j0=16, ST0="", STM="", STO="", swaps=(), pw=4, two=0, tws=False, tlate=False, SCO="sc1 nt", wmode="j0", jm=0, SOUT="", wb=0, fmap=0, fake=0, lim=None, gate=None, freeC=None, freeK=None, fdepth=12, kown=True, nocomm=0, wlim=None, WNT="nt", WONT="nt", rowmap=3, nsplit=4):
    A = Asm()
    uid = [0]
    def lab(p):
        uid[0] += 1
        return f"L_{p}{uid[0]}"
    def stamp(k):
        if stamps: A(f"s_memrealtime s[{64+2*k}:{65+2*k}]")
    def D(j): return f"v[{8+4*j}:{11+4*j}]"
    VM, P0, P1, VT, ACC, A0, A1 = 136, 140, 141, 143, 144, 148, 152
    DPPF = "row_mask:0xf bank_mask:0xf"
    def bf16r(dst, src):
        A(f"v_cvt_pk_bf16_f32 v{dst}, v{src}, v{src}")
        A(f"v_and_b32 v{dst}, 0xffff0000, v{dst}")
    def loop_tail(l, d, sleep):
        A(f"s_cbranch_vccz {d}")
        if sleep: A(f"s_sleep {sleep}")
        A("s_sub_u32 s38, s38, 1")
        A(f"s_cbranch_scc0 {l}"); A("s_branch L_end")
        A.label(d)
    def lds_wait(off, extra=(), sleep=1, vt=156, addr=2, cmp="v_cmp_eq_u32 vcc, 0,"):
        l = lab("lw"); d = lab("ld")
        A.label(l)
        A(f"ds_read_b32 v{vt}, v{addr} offset:{off}")
        for e in extra: A(e)
        A("s_waitcnt lgkmcnt(0)")
        A(f"{cmp} v{vt}")
        loop_tail(l, d, sleep)
    def lds_set(off, vt=157):
        A(f"v_mov_b32 v{vt}, 1")
        A(f"ds_write_b32 v2, v{vt} offset:{off}")
    def tag_setup(tput=None, tchk=None):
        A("s_add_u32 s57, s56, 1")
        if tput: A(f"s_movk_i32 s58, {(1 << tput) - 1}")
        if tchk: A(f"s_movk_i32 s59, {-(1 << tchk) & 0xffff}")
        A(f"v_mov_b32 v{VT}, s57")
    def tag_put(r, n=4):
        for t in range(n): A(f"v_bfi_b32 v{r+t}, s58, v{VT}, v{r+t}")
    def tag_check(r, t1, t2, T, vmid=None):
        A(f"v_bitop3_b32 v{t1}, v{r}, v{r+1}, v{VT} bitop3:0x7e")
        A(f"v_bitop3_b32 v{t2}, v{r+2}, v{r+3}, v{VT} bitop3:0x7e")
        A(f"v_or_b32 v{t1}, v{t1}, v{t2}")
        A(f"v_and_b32 v{t1}, {(1 << T) - 1}, v{t1}")
        A(f"v_cmp_ne_u32 vcc, 0, v{t1}")
        mid = f"v{vmid}" if vmid else str(1 << (T - 1))
        for k in range(4): A(f"v_and_or_b32 v{r+k}, v{r+k}, s59, {mid}")
    def poll4(r, addr, flags, t1, t2, T, vmid=None, first_issued=False, sleep=0):
        l = lab("pl"); d = lab("pd"); e = lab("pe")
        if first_issued: A(f"s_branch {e}")
        A.label(l)
        A(f"global_load_dwordx4 v[{r}:{r+3}], v{addr}, s[26:27] {flags}")
        A.label(e)
        A("s_waitcnt vmcnt(0)")
        A(f"v_bitop3_b32 v{t1}, v{r}, v{r+1}, v{VT} bitop3:0x7e")
        A(f"v_bitop3_b32 v{t2}, v{r+2}, v{r+3}, v{VT} bitop3:0x7e")
        A(f"v_or_b32 v{t1}, v{t1}, v{t2}")
        A(f"v_and_b32 v{t1}, {(1 << T) - 1}, v{t1}")
        A(f"v_cmp_ne_u32 vcc, 0, v{t1}")
        A(f"s_cbranch_vccz {d}")
        A("s_mov_b64 exec, vcc")
        if sleep: A(f"s_sleep {sleep}")
        A("s_sub_u32 s38, s38, 1")
        A(f"s_cbranch_scc0 {l}"); A("s_branch L_end")
        A.label(d)
        A("s_mov_b64 exec, -1")
        mid = f"v{vmid}" if vmid else str(1 << (T - 1))
        for k in range(4): A(f"v_and_or_b32 v{r+k}, v{r+k}, s59, {mid}")
    def poll_free(r, dst, addr, flags, t1, t2, T, sleep, vmid=None):
        l = lab("fl"); d = lab("fd")
        for k in range(4): A(f"v_not_b32 v{r+k}, v{VT}")
        A.label(l)
        A(f"global_load_dwordx4 v[{r}:{r+3}], v{addr}, s[26:27] {flags}")
        A(f"s_waitcnt vmcnt({fdepth})")
        if sleep: A(f"s_sleep {sleep}")
        A(f"v_bitop3_b32 v{t1}, v{r}, v{r+1}, v{VT} bitop3:0x7e")
        A(f"v_bitop3_b32 v{t2}, v{r+2}, v{r+3}, v{VT} bitop3:0x7e")
        A(f"v_or_b32 v{t1}, v{t1}, v{t2}")
        A(f"v_and_b32 v{t1}, {(1 << T) - 1}, v{t1}")
        A(f"v_cmp_ne_u32 vcc, 0, v{t1}")
        A(f"s_cbranch_vccz {d}")
        A("s_mov_b64 exec, vcc")
        A("s_sub_u32 s38, s38, 1")
        A(f"s_cbranch_scc0 {l}"); A("s_branch L_end")
        A.label(d)
        A("s_mov_b64 exec, -1")
        mid = f"v{vmid}" if vmid else str(1 << (T - 1))
        for k in range(4): A(f"v_and_or_b32 v{dst+k}, v{r+k}, s59, {mid}")
    def group_store(addr, data, fl):
        l1 = lab("gs"); l2 = lab("gt")
        A("s_cmp_eq_u32 s60, 1")
        A(f"s_cbranch_scc0 {l1}")
        A(f"global_store_dwordx4 {addr}, {data}, s[26:27] {fl}")
        A(f"s_branch {l2}")
        A.label(l1)
        A(f"global_store_dwordx4 {addr}, {data}, s[26:27] {SCX}")
        A.label(l2)
    def masks():
        A("v_and_b32 v156, 1, v3"); A("v_lshlrev_b32 v156, 4, v156"); A("v_mov_b32 v157, 0xffff")
        A("v_lshlrev_b32 v157, v156, v157"); A("v_lshrrev_b32 v156, 1, v3")
        for u in range(4): A(f"v_cmp_eq_u32 s[{48+2*u}:{49+2*u}], {u}, v156")
        for u in range(4): A(f"v_cndmask_b32 v{VM+u}, 0, v157, s[{48+2*u}:{49+2*u}]")
    def abuild(dst, preg, k):
        for u in range(4):
            A(f"v_and_b32_dpp v{dst+u}, v{preg}, v{VM+u} row_newbcast:{k} {DPPF}")
    def gemv(n, src, waits=None, hook=None):
        abuild(A0, *src(0))
        for j in range(n):
            cur = A0 if j % 2 == 0 else A1
            nxt = A1 if j % 2 == 0 else A0
            if j + 1 < n: abuild(nxt, *src(j + 1))
            if waits is not None and waits(j) is not None: A(f"s_waitcnt vmcnt({waits(j)})")
            if hook: hook(j)
            c = "0" if j == 0 else f"v[{ACC}:{ACC+3}]"
            A(f"v_mfma_f32_16x16x32_bf16 v[{ACC}:{ACC+3}], v[{cur}:{cur+3}], {D(j)}, {c}")
    def rowsum(v, op="v_add_f32"):
        for k in (8, 4, 2, 1):
            A(f"{op}_dpp v{v}, v{v}, v{v} row_ror:{k} {DPPF}")
    def red8(v, op):
        A(f"{op}_dpp v{v}, v{v}, v{v} quad_perm:[1,0,3,2] {DPPF}")
        A(f"{op}_dpp v{v}, v{v}, v{v} quad_perm:[2,3,0,1] {DPPF}")
        A(f"{op}_dpp v{v}, v{v}, v{v} row_half_mirror {DPPF}")
    def wavesum_to_s(v, s):
        rowsum(v)
        A(f"v_add_f32_dpp v{v}, v{v}, v{v} row_bcast:15 row_mask:0xa bank_mask:0xf")
        A(f"v_add_f32_dpp v{v}, v{v}, v{v} row_bcast:31 row_mask:0xc bank_mask:0xf")
        A(f"v_readlane_b32 s{s}, v{v}, 63")
    def combine_setup():
        A("s_lshl_b32 s46, s31, 10")
        A("v_add_u32 v5, s46, v1")
        A("v_mov_b32 v6, 1")
    def combine(lbase, tk, rd):
        A(f"ds_write_b128 v5, v[{ACC}:{ACC+3}] offset:{lbase}")
        A("s_mov_b64 exec, 1")
        A(f"ds_add_rtn_u32 v6, v2, v6 offset:{tk}")
        A("s_mov_b64 exec, -1")
        A(f"ds_read_b128 v[156:159], v{rd} offset:{lbase}")
        A(f"ds_read_b128 v[160:163], v{rd} offset:{lbase+1024}")
        A(f"ds_read_b128 v[164:167], v{rd} offset:{lbase+2048}")
        A(f"ds_read_b128 v[148:151], v{rd} offset:{lbase+3072}")
        A("s_waitcnt lgkmcnt(0)")
        A("v_readfirstlane_b32 s46, v6")
        A("v_pk_add_f32 v[156:157], v[156:157], v[160:161]")
        A("v_pk_add_f32 v[158:159], v[158:159], v[162:163]")
        A("v_pk_add_f32 v[164:165], v[164:165], v[148:149]")
        A("v_pk_add_f32 v[166:167], v[166:167], v[150:151]")
        A("s_cmp_eq_u32 s46, 3")
        A("s_cbranch_scc0 L_end")
        A("v_pk_add_f32 v[156:157], v[156:157], v[164:165]")
        A("v_pk_add_f32 v[158:159], v[158:159], v[166:167]")
        tag_put(156)
    def silu(dst, z, t):
        A(f"v_mul_f32 v{t}, {H(f2u(-LOG2E))}, v{z}")
        A(f"v_exp_f32 v{t}, v{t}")
        A(f"v_add_f32 v{t}, 1.0, v{t}")
        A(f"v_rcp_f32 v{t}, v{t}")
        A(f"v_mul_f32 v{dst}, v{z}, v{t}")

    def touch_code(vb):
        if two:
            stride = 163840 // two
            A("s_mul_i32 s46, s28, 163840"); A("s_mul_i32 s47, s29, 160"); A("s_add_u32 s46, s46, s47")
            A(f"v_mul_u32_u24 v{vb}, {stride}, v0"); A(f"v_add_u32 v{vb}, s46, v{vb}")
            A(f"s_mov_b64 exec, {(1 << two) - 1}" if two < 32 else f"s_mov_b32 exec_hi, {(1 << (two - 32)) - 1}")
            A(f"global_load_dword v{vb+1}, v{vb}, s[12:13] nt")
            A("s_mov_b64 exec, -1")
        if tws:
            A("s_mul_i32 s46, s2, 640"); A(f"s_add_u32 s46, s46, {SY}"); A(f"v_mov_b32 v{vb}, s46")
            A("s_lshl_b32 s46, s30, 9"); A(f"s_add_u32 s46, s46, {SO}"); A(f"v_writelane_b32 v{vb}, s46, 1")
            A("s_mov_b64 exec, 3")
            A(f"global_load_dword v{vb+2}, v{vb}, s[26:27] nt")
            A("s_mov_b64 exec, 1")
            A(f"global_load_dword v{vb+3}, v2, s[22:23] nt")
            A("s_mov_b64 exec, -1")
    def eload():
        A(f"s_load_dword s56, s[26:27], {EP}")

    hdr = [f"; @launch grid=(256,1,1) block=(768,1,1) lds={LDS_BYTES}",
           '.amdgcn_target "amdgcn-amd-amdhsa--gfx950"', ".text", f".globl {KN}", ".p2align 8", f".type {KN},@function"]
    A.label(KN)
    stamp(0)
    A("s_load_dwordx16 s[4:19], s[0:1], 0")
    A("s_load_dwordx8 s[20:27], s[0:1], 64")
    A("v_lshrrev_b32 v1, 6, v0")
    A("s_cmpk_ge_u32 s2, 256")
    A("v_readfirstlane_b32 s3, v1")
    A("s_cbranch_scc1 L_exit")
    A("v_and_b32 v0, 63, v0")
    A("s_and_b32 s28, s2, 31")
    for a_, b_ in swaps:
        A(f"s_bitcmp1_b32 {H((1 << a_) | (1 << b_))}, s28")
        A(f"s_cselect_b32 s46, {a_ ^ b_}, 0")
        A("s_xor_b32 s28, s28, s46")
    A("s_lshr_b32 s29, s2, 5")
    A("s_cmp_lt_u32 s3, 4")
    A("s_cbranch_scc1 L_aux")
    A("s_and_b32 s31, s3, 3")
    A("s_lshl_b32 s36, s28, 6")
    A("s_add_u32 s36, s36, s29")
    A("s_add_u32 s36, s36, 56")
    A("s_lshl_b32 s36, s36, 17")
    A("s_xor_b32 s37, s2, s31")
    A("s_lshl_b32 s37, s37, 25")
    A("s_lshr_b32 s37, s37, 15")
    A("s_or_b32 s36, s36, s37")
    A("v_lshlrev_b32 v1, 4, v0")
    A("s_brev_b32 s34, 8")
    A("s_mov_b32 s35, 0x20000")
    A("s_setprio 2")
    A("s_cmp_lt_u32 s3, 8")
    A("s_cbranch_scc1 L_kv1")
    A("s_setprio 1")
    A("s_barrier")
    if lim:
        A(f"s_mov_b32 s38, {SPIN}")
        A("s_lshl_b32 s46, s31, 2"); A("v_mov_b32 v4, s46")
        lds_wait(F_W + 48, sleep=1, addr=4)
        A("s_cmp_lt_u32 s3, 8")
    A.label("L_kv1")
    A("s_waitcnt lgkmcnt(0)")
    A("s_cselect_b32 s32, s6, s8")
    A("s_cselect_b32 s33, s7, s9")
    stamp(1)
    for j in range(32):
        if j == kpre:
            eload()
            A("s_cmp_lt_u32 s3, 8")
            A("s_cbranch_scc0 L_kv2")
            A("s_barrier")
            A.label("L_kv2")
        if lim and j >= lim: A(f"s_waitcnt vmcnt({lim-1})")
        if j == 0:
            A(f"buffer_load_dwordx4 {D(j)}, v1, s[32:35], s36 offen nt")
        else:
            A(f"s_xor_b32 s37, s36, {j << 12}")
            A(f"buffer_load_dwordx4 {D(j)}, v1, s[32:35], s37 offen nt")
    stamp(2)
    A("v_mov_b32 v2, 0")
    A("v_and_b32 v3, 15, v0")
    A(f"s_mov_b32 s38, {SPIN}")
    A("s_lshl_b32 s30, s28, 3")
    A("s_add_u32 s30, s30, s29")
    masks()
    A("s_waitcnt lgkmcnt(0)")
    tag_setup(T1, T1)
    A("s_cmp_lt_u32 s3, 8")
    A("s_cbranch_scc1 L_k")
    A("s_lshl_b32 s46, s31, 9")
    A("v_lshl_add_u32 v4, v0, 3, s46")
    A("s_lshl_b32 s46, s31, 2")
    A("v_mov_b32 v5, s46")
    lds_wait(F_P, extra=[f"ds_read_b64 v[{P0}:{P1}], v4 offset:{L_P}", f"ds_read_b32 v157, v2 offset:{F_X}"], addr=5)
    stamp(3)
    A("s_setprio 3")
    A("v_readfirstlane_b32 s60, v157")
    A("s_lshl_b32 s47, s30, 9")
    A(f"s_add_u32 s47, s47, {SO}")
    A("v_add_u32 v7, s47, v1")
    A("v_mov_b32 v4, v5")
    combine_setup()
    def hook(j):
        if j == 0: A(f"ds_write_b32 v4, v6 offset:{F_W+16}")
        if j == j0: A(f"ds_write_b32 v4, v6 offset:{F_W}")
    gemv(32, lambda j: (P0 + j // 16, j % 16), waits=lambda j: 31 - j, hook=hook)
    stamp(4)
    combine(L_O, TK_O, 1)
    A("s_mov_b32 exec_hi, 0")
    group_store("v7", "v[156:159]", STO)
    lds_set(F_W + 32, 160)
    stamp(5)
    A("s_branch L_end")
    A.label("L_k")
    if lim:
        A("s_lshl_b32 s46, s31, 2"); A("v_mov_b32 v4, s46"); A("v_mov_b32 v5, 1")
        A(f"s_waitcnt vmcnt({gate})")
        A(f"ds_write_b32 v4, v5 offset:{F_W+48}")
    A("v_lshlrev_b32 v4, 4, v3")
    A("s_mov_b32 s40, 0xcccccccc"); A("s_mov_b32 s41, 0xcccccccc")
    A("s_mov_b32 s42, 0xaaaaaaaa"); A("s_mov_b32 s43, 0xaaaaaaaa")
    lds_wait(F_Q, extra=[f"ds_read_b128 v[160:163], v4 offset:{L_Q}", f"ds_read_b32 v157, v2 offset:{F_X}"], sleep=2)
    stamp(3)
    A("s_setprio 3")
    A("v_readfirstlane_b32 s60, v157")
    def bitrev4(x): return ((x & 1) << 3) | ((x & 2) << 1) | ((x & 4) >> 1) | ((x & 8) >> 3)
    for half in range(2):
        A(f"s_waitcnt vmcnt({16 if half == 0 else 0})")
        for j4 in range(4):
            js = [16 * half + 4 * j4 + t for t in range(4)]
            for k in range(4):
                for j in js:
                    b = 8 + 4 * j
                    if k == 0: A(f"v_dot2_f32_bf16 v{b}, v{b}, v160, 0")
                    else: A(f"v_dot2c_f32_bf16 v{b}, v{b+k}, v{160+k}")
        a = [8 + 4 * (16 * half + bitrev4(m)) for m in range(16)]
        for k in range(8): A(f"v_add_f32_dpp v{a[2*k]}, v{a[2*k]}, v{a[2*k]} row_ror:8 row_mask:0xf bank_mask:0x3")
        for k in range(8): A(f"v_add_f32_dpp v{a[2*k]}, v{a[2*k+1]}, v{a[2*k+1]} row_ror:8 row_mask:0xf bank_mask:0xc")
        b = [a[2*k] for k in range(8)]
        for k in range(4): A(f"v_add_f32_dpp v{b[2*k]}, v{b[2*k]}, v{b[2*k]} row_half_mirror row_mask:0xf bank_mask:0x5")
        for k in range(4): A(f"v_add_f32_dpp v{b[2*k]}, v{b[2*k+1]}, v{b[2*k+1]} row_half_mirror row_mask:0xf bank_mask:0xa")
        c = [b[2*k] for k in range(4)]
        for k in range(4): A(f"v_add_f32_dpp v{c[k]}, v{c[k]}, v{c[k]} quad_perm:[2,3,0,1] {DPPF}")
        for k in range(2): A(f"v_cndmask_b32 v{c[2*k]}, v{c[2*k]}, v{c[2*k+1]}, s[40:41]")
        dd = [c[0], c[2]]
        for k in range(2): A(f"v_add_f32_dpp v{dd[k]}, v{dd[k]}, v{dd[k]} quad_perm:[1,0,3,2] {DPPF}")
        A(f"v_cndmask_b32 v{164+half}, v{dd[0]}, v{dd[1]}, s[42:43]")
    A("v_cvt_pk_bf16_f32 v166, v164, v165")
    A("v_lshlrev_b32 v164, 16, v166"); A("v_and_b32 v165, 0xffff0000, v166")
    A(f"v_mul_f32 v164, {H(f2u(128 ** -0.5))}, v164"); A(f"v_mul_f32 v165, {H(f2u(128 ** -0.5))}, v165")
    A("v_cvt_pk_bf16_f32 v166, v164, v165")
    A("v_lshlrev_b32 v164, 16, v166"); A("v_and_b32 v165, 0xffff0000, v166")
    A(f"v_mul_f32 v164, {H(f2u(LOG2E))}, v164"); A(f"v_mul_f32 v165, {H(f2u(LOG2E))}, v165")
    A("v_max_f32 v160, v164, v165")
    rowsum(160, "v_max_f32")
    A("v_lshrrev_b32 v5, 4, v0"); A("s_lshl_b32 s46, s31, 4"); A("v_lshl_add_u32 v5, v5, 2, s46")
    A("v_lshlrev_b32 v6, 2, v3")
    A(f"ds_write_b32 v5, v160 offset:{L_MX}")
    lds_wait(L_MX, sleep=0, vt=160, addr=6, cmp="v_cmp_eq_u32 vcc, -1,")
    rowsum(160, "v_max_f32")
    A("v_sub_f32 v164, v164, v160"); A("v_sub_f32 v165, v165, v160")
    A("v_exp_f32 v164, v164"); A("v_exp_f32 v165, v165")
    A("s_lshl_b32 s46, s31, 9")
    A("v_lshl_add_u32 v4, v0, 3, s46")
    A(f"v_cvt_pk_bf16_f32 v{P0}, v164, v164"); A(f"v_cvt_pk_bf16_f32 v{P1}, v165, v165")
    A("v_add_f32 v162, v164, v165")
    A("s_lshl_b32 s46, s31, 2")
    A("v_mov_b32 v7, s46"); A("v_mov_b32 v157, 1")
    A(f"ds_write_b64 v4, v[{P0}:{P1}] offset:{L_P}")
    A(f"ds_write_b32 v7, v157 offset:{F_P}")
    rowsum(162)
    A(f"ds_write_b32 v5, v162 offset:{L_LS}")
    stamp(4)
    A("s_cmp_eq_u32 s31, 0")
    A("s_cselect_b32 s61, 0, -1")
    A("s_cbranch_scc0 L_k2")
    lds_wait(L_LS, sleep=0, vt=162, addr=6, cmp="v_cmp_eq_u32 vcc, -1,")
    rowsum(162)
    A("s_lshl_b32 s46, s30, 4"); A(f"s_add_u32 s46, s46, {ML}"); A("v_mov_b32 v7, s46")
    A(f"v_mov_b32 v161, v{VT}"); A(f"v_mov_b32 v163, v{VT}")
    A("s_mov_b64 exec, 1")
    if not (nocomm & 2): group_store("v7", "v[160:163]", STM)
    A("s_mov_b64 exec, -1")
    if tlate: touch_code(100)
    A.label("L_k2")
    A("v_and_b32 v4, 7, v0")
    A("s_lshl_b32 s46, s28, 12"); A("s_lshl_b32 s47, s31, 7"); A("s_add_u32 s46, s46, s47"); A(f"s_add_u32 s46, s46, {SO}")
    A("v_lshrrev_b32 v40, 3, v0"); A("v_lshlrev_b32 v40, 4, v40"); A("v_lshl_add_u32 v40, v4, 9, v40"); A("v_add_u32 v40, s46, v40")
    A("s_lshl_b32 s46, s28, 7"); A(f"s_add_u32 s46, s46, {ML}"); A("v_lshl_add_u32 v42, v4, 4, s46")
    A("s_mul_i32 s46, s2, 640"); A(f"s_add_u32 s46, s46, {SY}"); A("v_add_u32 v7, s46, v1")
    A("v_and_b32 v43, 1, v0"); A("v_lshlrev_b32 v43, 9, v43"); A("v_bfe_u32 v44, v0, 1, 1"); A("v_lshl_add_u32 v43, v44, 8, v43")
    A("v_lshrrev_b32 v44, 2, v0"); A("v_lshl_add_u32 v43, v44, 4, v43")
    A(f"s_movk_i32 s58, {(1 << T2) - 1}")
    stamp(5)
    A("s_mov_b32 s32, s12"); A("s_mov_b32 s33, s13"); A(f"s_mov_b32 s34, {4096*640*2}")
    A("s_lshl_b32 s46, s28, 7"); A("s_and_b32 s47, s31, 1"); A("s_lshl_b32 s47, s47, 6"); A("s_add_u32 s46, s46, s47")
    A("s_lshr_b32 s47, s31, 1"); A("s_lshl_b32 s47, s47, 2"); A("s_add_u32 s46, s46, s47")
    A("s_mul_i32 s36, s46, 1280"); A("s_mul_i32 s47, s29, 160"); A("s_add_u32 s36, s36, s47")
    A("s_add_u32 s37, s36, 10240")
    A("v_lshrrev_b32 v41, 4, v0"); A("v_mul_u32_u24 v41, 20480, v41"); A("v_lshl_add_u32 v41, v3, 4, v41")
    combine_setup()
    A("s_mov_b32 s44, 0x03ff03ff"); A("s_mov_b32 s45, 0x03ff03ff")
    def wo_loads(lo=0, hi=8):
        if fake:
            A("s_mul_i32 s36, s30, 20480"); A("s_mul_i32 s37, s31, 5120"); A("s_add_u32 s36, s36, s37"); A("s_add_u32 s37, s36, 4096")
            for k in range(4): A(f"buffer_load_dwordx4 {D(k)}, v1, s[32:35], s36 offen offset:{k*1024} nt")
            A(f"buffer_load_dwordx4 {D(4)}, v1, s[32:35], s37 offen nt")
            stamp(6)
            return
        A("s_mov_b64 exec, s[44:45]")
        for k in range(lo, hi):
            b1, b2, b3 = k & 1, (k >> 1) & 1, k >> 2
            if wlim and k >= wlim: A(f"s_waitcnt vmcnt({wlim-1})")
            A(f"buffer_load_dwordx4 {D(k)}, v41, s[32:35], s{37 if b3 else 36} offen offset:{(2*b1+b2)*1280} {WONT}")
        A("s_mov_b64 exec, -1")
        stamp(6)
    if wmode == "early": wo_loads()
    lds_wait(F_F, sleep=2)
    A("s_lshl_b32 s46, s31, 2"); A("v_mov_b32 v48, s46")
    if jm is not None: lds_wait(F_W + 16, sleep=2, addr=48)
    l = lab("ml"); d = lab("me")
    A.label(l)
    if nocomm & 2:
        for k in range(4): A(f"v_mov_b32 v{44+k}, v{VT}")
    else: A(f"global_load_dwordx4 v[44:47], v42, s[26:27] {SCL}")
    if wmode == "j0":
        if j0 is not None: lds_wait(F_W, sleep=1, addr=48)
        wo_loads()
        A(f"s_waitcnt vmcnt({5 if fake else 8})")
    elif wmode == "split":
        if j0 is not None: lds_wait(F_W, sleep=1, addr=48)
        wo_loads(0, nsplit)
        A(f"s_waitcnt vmcnt({nsplit})")
    else:
        A("s_waitcnt vmcnt(0)")
    A(f"v_bitop3_b32 v164, v45, v47, v{VT} bitop3:0x7e")
    A("v_cmp_ne_u32 vcc, 0, v164")
    loop_tail(l, d, 1)
    A("v_mov_b32 v45, v44")
    red8(45, "v_max_f32")
    A("v_sub_f32 v44, v44, v45")
    A("v_exp_f32 v44, v44")
    A("v_mul_f32 v46, v46, v44")
    red8(46, "v_add_f32")
    A("v_rcp_f32 v46, v46")
    A("v_mul_f32 v142, v44, v46")
    if wmode != "j0" or kown: lds_wait(F_W + 32, sleep=0)
    if wmode == "post": wo_loads()
    if wmode == "split": wo_loads(nsplit, 8)
    if wmode != "early": A(f"s_waitcnt vmcnt({pw})")
    stamp(7)
    if freeK is None: poll4(160, 40, SCO, 164, 165, T1, sleep=ksleep)
    else: poll_free(52, 160, 40, SCO, 164, 165, T1, freeK)
    stamp(8)
    for t in range(4): A(f"v_mul_f32 v{160+t}, v142, v{160+t}")
    A("v_add_f32_dpp v160, v160, v160 row_half_mirror row_mask:0xf bank_mask:0x5")
    A("v_add_f32_dpp v162, v162, v162 row_half_mirror row_mask:0xf bank_mask:0x5")
    A("v_add_f32_dpp v160, v161, v161 row_half_mirror row_mask:0xf bank_mask:0xa")
    A("v_add_f32_dpp v162, v163, v163 row_half_mirror row_mask:0xf bank_mask:0xa")
    A(f"v_add_f32_dpp v160, v160, v160 quad_perm:[2,3,0,1] {DPPF}")
    A(f"v_add_f32_dpp v162, v162, v162 quad_perm:[2,3,0,1] {DPPF}")
    A("v_cndmask_b32 v160, v160, v162, s[40:41]")
    A(f"v_add_f32_dpp v160, v160, v160 quad_perm:[1,0,3,2] {DPPF}")
    A(f"v_cvt_pk_bf16_f32 v{P0}, v160, v160")
    gemv(8 if fake < 2 else 4, lambda j: (P0, 2 * j))
    A("s_mov_b32 exec_hi, s61")
    combine(L_Y, TK_Y, 43)
    A("s_mov_b32 exec_hi, 0xff")
    A(f"global_store_dwordx4 v7, v[156:159], s[26:27] {SCX}")
    if wb == 1: A("buffer_wbl2 sc1")
    if wb == 2:
        A("s_cmp_eq_u32 s29, 0"); A("s_cbranch_scc0 L_end"); A("buffer_wbl2 sc1")
    stamp(9)
    A("s_branch L_end")
    A.label("L_aux")
    A("s_setprio 3")
    A("v_mov_b32 v2, 0")
    A("v_and_b32 v3, 15, v0")
    A(f"s_mov_b32 s38, {SPIN}")
    A("s_lshl_b32 s30, s28, 3")
    A("s_add_u32 s30, s30, s29")
    A("s_cmp_ge_u32 s3, 2")
    A("s_cbranch_scc1 L_cd")
    A("s_cmp_eq_u32 s3, 1"); A("s_cselect_b32 s46, 27, 64"); A("s_cmp_ge_u32 s28, s46"); A("s_cbranch_scc1 L_cd1")
    A("v_lshrrev_b32 v1, 4, v0")
    A("v_mul_u32_u24 v4, 20, v0")
    if rowmap == 0:
        A("v_mul_u32_u24 v5, 20, v1")
        A("s_mul_i32 s46, s29, 80")
        A("v_add_u32 v5, s46, v5")
        A("v_add_lshl_u32 v6, v5, v3, 1")
        A("v_and_b32 v7, 3, v3"); A("v_add_lshl_u32 v7, v5, v7, 1")
    else:
        A("s_lshl_b32 s46, s29, 2")
        A("v_add_u32 v5, s46, v1")
        A("v_lshlrev_b32 v7, 1, v5")
        A("v_lshl_add_u32 v6, v3, 6, v7")
        A("v_and_b32 v7, 0xff, v6")
    A("s_waitcnt lgkmcnt(0)")
    stamp(1)
    eload()
    if not (nocomm & 4): A("global_load_dwordx4 v[88:91], v4, s[4:5]")
    if not (nocomm & 4): A("global_load_dword v92, v4, s[4:5] offset:16")
    if not (nocomm & 4): A("global_load_ushort v93, v6, s[4:5]")
    if not (nocomm & 4): A(f"global_load_ushort v94, v7, s[4:5] offset:{32 if rowmap == 0 else 1024}")
    A("s_add_u32 s48, s10, 128"); A("s_addc_u32 s49, s11, 0")
    A("s_cmp_eq_u32 s3, 0")
    A("s_cselect_b32 s50, s10, s16"); A("s_cselect_b32 s51, s11, s17")
    A("s_cselect_b32 s48, s48, s18"); A("s_cselect_b32 s49, s49, s19")
    A("s_movk_i32 s44, 3456"); A("s_cselect_b32 s44, 8192, s44"); A("s_mov_b32 s45, 0")
    A("s_cselect_b32 s46, 8, 7"); A("s_lshl_b32 s46, s28, s46")
    A("v_mul_lo_u32 v6, v5, s44")
    A("v_and_b32 v7, 7, v3"); A("v_lshl_add_u32 v6, v7, 4, v6"); A("v_add_u32 v6, s46, v6"); A("v_mov_b32 v7, 0")
    A("v_cmp_gt_u32 vcc, 8, v3")
    A("v_mov_b32 v4, s48"); A("v_mov_b32 v5, s49"); A("v_mov_b32 v95, s50"); A("v_mov_b32 v96, s51")
    A("v_cndmask_b32 v4, v4, v95, vcc"); A("v_cndmask_b32 v5, v5, v96, vcc")
    A("v_lshl_add_u64 v[4:5], v[6:7], 0, v[4:5]")
    if rowmap: A("s_lshl_b32 s44, s44, 5")
    for n in range(20):
        A(f"global_load_dwordx4 {D(n)}, v[4:5], off {WNT}")
        if n < 19: A("v_lshl_add_u64 v[4:5], v[4:5], 0, s[44:45]")
    A("s_waitcnt lgkmcnt(0)")
    A("s_barrier")
    stamp(2)
    masks()
    tag_setup(T0, T0)
    A("s_getreg_b32 s46, hwreg(HW_REG_XCC_ID, 0, 4)")
    A(f"v_xor_b32 v142, s46, v{VT}")
    A("s_waitcnt vmcnt(20)")
    for k in range(5):
        A(f"v_lshlrev_b32 v{100+2*k}, 16, v{88+k}"); A(f"v_and_b32 v{101+2*k}, 0xffff0000, v{88+k}")
    A("v_add_f32 v110, v100, v101")
    for k in range(2, 10): A(f"v_add_f32 v110, v110, v{100+k}")
    wavesum_to_s(110, 46)
    A(f"v_mov_b32 v111, {H(f2u(1.0/640))}")
    A("v_mul_f32 v112, s46, v111")
    for k in range(10): A(f"v_sub_f32 v{100+k}, v{100+k}, v112")
    A("v_mul_f32 v110, v100, v100")
    for k in range(1, 10): A(f"v_fmac_f32 v110, v{100+k}, v{100+k}")
    wavesum_to_s(110, 46)
    A("v_mul_f32 v113, s46, v111")
    bf16r(112, 112); bf16r(113, 113)
    A(f"v_add_f32 v113, {H(f2u(1e-5))}, v113"); bf16r(113, 113)
    A("v_sqrt_f32 v113, v113"); bf16r(113, 113)
    A("v_rcp_f32 v114, v113")
    for k in range(2):
        x = 93 + k
        A(f"v_lshlrev_b32 v{x}, 16, v{x}"); A(f"v_sub_f32 v{x}, v{x}, v112"); bf16r(x, x)
        A(f"v_mul_f32 v115, v{x}, v114"); A(f"v_fma_f32 v116, -v115, v113, v{x}"); A("v_fmac_f32 v115, v116, v114")
        A(f"v_cvt_pk_bf16_f32 v{P0+k}, v115, v115")
    stamp(3)
    A("s_lshl_b32 s39, s3, 17")
    A("s_lshl_b32 s46, s30, 9"); A("s_add_u32 s46, s46, s39")
    A("v_lshl_add_u32 v4, v0, 4, s46")
    if prew:
        A("s_mov_b32 exec_lo, 0")
        A(f"v_add_u32 v4, {SO - 512}, v4")
        A("s_mov_b64 exec, -1")
        A("s_cmp_eq_u32 s3, 0"); A("s_cselect_b32 s62, -1, 0")
    A("s_lshl_b32 s46, s28, 12"); A("s_add_u32 s46, s46, s39")
    A("v_lshl_add_u32 v5, v0, 4, s46")
    gemv(20, lambda j: (P0 + j // 16, j % 16), waits=lambda j: 19 - j)
    tag_put(ACC, 3)
    A(f"v_bfi_b32 v{ACC+3}, s58, v142, v{ACC+3}")
    if prew:
        A("s_mov_b32 exec_lo, 0")
        A(f"v_not_b32 v{ACC}, v{VT}"); A(f"v_not_b32 v{ACC+2}, v{VT}")
        A("s_mov_b32 exec_lo, -1")
        A("s_mov_b32 exec_hi, s62")
    else:
        A("s_mov_b32 exec_hi, 0")
    if not (nocomm & 1): A(f"global_store_dwordx4 v4, v[{ACC}:{ACC+3}], s[26:27] {ST0}")
    A("s_mov_b64 exec, -1")
    stamp(4)
    A("s_waitcnt vmcnt(0)")
    A(f"s_mov_b32 s61, {RETRY}")
    A("s_cmp_eq_u32 s3, 0")
    A("s_cbranch_scc1 L_ab2")
    lds_set(F_B)
    lds_wait(F_X, sleep=8)
    A("v_cmp_eq_u32 vcc, 1, v156")
    A("s_cbranch_vccnz L_end")
    A("s_mov_b32 exec_hi, 0")
    A(f"global_store_dwordx4 v4, v[{ACC}:{ACC+3}], s[26:27] {SCX}")
    A("s_branch L_end")
    A.label("L_ab2")
    stamp(5)
    l = lab("ga"); d = lab("ge"); e = lab("gf")
    A.label(l)
    if nocomm & 1:
        A("s_sleep 100")
        for k in range(16): A(f"v_mov_b32 v{96+k}, v{142 if k % 4 == 3 else VT}")
    else:
        for k in range(4): A(f"global_load_dwordx4 v[{96+4*k}:{99+4*k}], v5, s[26:27] offset:{1024*k} {SCL}")
    A("s_waitcnt vmcnt(0)")
    for k in range(4): A(f"v_bitop3_b32 v{112+k}, v{96+4*k}, v{97+4*k}, v{VT} bitop3:0x7e")
    A(f"v_bitop3_b32 v116, v98, v102, v{VT} bitop3:0x7e")
    A(f"v_bitop3_b32 v117, v106, v110, v{VT} bitop3:0x7e")
    A("v_or3_b32 v112, v112, v113, v114"); A("v_or3_b32 v112, v112, v115, v116"); A("v_or_b32 v112, v112, v117")
    A(f"v_and_b32 v112, {(1 << T0) - 1}, v112")
    A("v_cmp_ne_u32 vcc, 0, v112")
    A(f"s_cbranch_vccz {d}")
    A("s_sub_u32 s61, s61, 1")
    A("s_cmp_eq_u32 s61, 0")
    A(f"s_cbranch_scc0 {e}")
    A("s_mov_b32 exec_hi, 0")
    A(f"global_store_dwordx4 v4, v[{ACC}:{ACC+3}], s[26:27] {SCX}")
    A("s_mov_b64 exec, -1")
    A.label(e)
    A("s_sleep 4")
    A("s_sub_u32 s38, s38, 1")
    A(f"s_cbranch_scc0 {l}"); A("s_branch L_end")
    A.label(d)
    stamp(6)
    A("v_bitop3_b32 v112, v99, v103, v142 bitop3:0x7e")
    A("v_bitop3_b32 v113, v107, v111, v142 bitop3:0x7e")
    A("v_or_b32 v112, v112, v113")
    A(f"v_and_b32 v112, {(1 << T0) - 1}, v112")
    A("v_cmp_ne_u32 vcc, 0, v112")
    for k in range(16): A(f"v_and_or_b32 v{96+k}, v{96+k}, s59, {1 << (T0 - 1)}")
    for k in range(1, 4):
        A(f"v_pk_add_f32 v[96:97], v[96:97], v[{96+4*k}:{97+4*k}]")
        A(f"v_pk_add_f32 v[98:99], v[98:99], v[{98+4*k}:{99+4*k}]")
    A("v_permlane32_swap_b32 v96, v98")
    A("v_permlane32_swap_b32 v97, v99")
    A("v_add_f32 v96, v96, v98"); A("v_add_f32 v97, v97, v99")
    A("s_cmp_eq_u32 s3, 0")
    A("s_cbranch_scc0 L_b")
    A("v_cvt_pk_bf16_f32 v96, v96, v97")
    A("v_and_b32 v6, 1, v1"); A("v_lshlrev_b32 v6, 3, v6"); A("v_lshl_add_u32 v6, v3, 4, v6")
    A("v_lshrrev_b32 v7, 1, v1"); A("v_lshl_add_u32 v6, v7, 2, v6")
    A("s_cmp_eq_u64 vcc, 0"); A("s_cselect_b32 s46, 1, 2")
    A("v_mov_b32 v98, 1"); A("v_mov_b32 v99, s46")
    A(f"ds_write_b32 v6, v96 offset:{L_Q}")
    A(f"ds_write_b64 v2, v[98:99] offset:{F_Q}")
    stamp(7)
    A("s_cbranch_scc1 L_fin")
    A("s_mov_b32 exec_hi, 0")
    A(f"global_store_dwordx4 v4, v[{ACC}:{ACC+3}], s[26:27] {SCX}")
    A("s_branch L_fin")
    A.label("L_b")
    A(f"v_mov_b32_dpp v98, v96 row_ror:8 {DPPF}")
    A("v_mov_b32_dpp v96, v97 row_ror:8 row_mask:0xf bank_mask:0xc")
    A("v_mov_b32_dpp v97, v98 quad_perm:[0,1,2,3] row_mask:0xf bank_mask:0x3")
    bf16r(96, 96); bf16r(97, 97)
    silu(96, 96, 98); bf16r(96, 96)
    A("v_mul_f32 v96, v96, v97")
    A(f"v_cvt_pk_bf16_f32 v{P0}, v96, v96")
    stamp(8)
    gemv(16, lambda j: (P0, j))
    A.label("L_fpub")
    A("v_lshlrev_b32 v7, 4, v0")
    A("s_mov_b32 exec_hi, 0")
    A(f"ds_write_b128 v7, v[{ACC}:{ACC+3}] offset:{L_Y+512}")
    lds_set(F_F)
    stamp(9)
    A("s_branch L_fin")
    A.label("L_cd")
    A("v_lshrrev_b32 v1, 4, v0")
    A("s_cmp_eq_u32 s3, 2")
    A("s_cbranch_scc0 L_d0")
    if not tlate:
        A("s_waitcnt lgkmcnt(0)")
        touch_code(100)
    A("s_cmp_lt_u32 s28, 27")
    A("s_cbranch_scc1 L_exit")
    A("s_branch L_cd1")
    A.label("L_d0")
    A("v_subrev_u32 v4, 32, v0")
    A("v_ashrrev_i32 v4, 31, v4")
    A("v_lshlrev_b32 v5, 2, v0")
    A("ds_write_b32 v5, v4")
    if prefetch:
        A("s_getpc_b64 s[40:41]")
        A.label("L_pc")
        A(f"s_sub_u32 s40, s40, L_pc-{KN}")
        A("s_subb_u32 s41, s41, 0")
        A("s_lshr_b32 s46, s2, 3")
        A("s_mul_i32 s47, s46, 26"); A("s_lshr_b32 s47, s47, 8"); A("s_mul_i32 s47, s47, 10"); A("s_sub_u32 s46, s46, s47")
        A("s_lshl_b32 s46, s46, 10")
        A("v_lshl_add_u32 v6, v0, 4, s46")
        A("global_load_dwordx4 v[120:123], v6, s[40:41]")
    A("s_waitcnt lgkmcnt(0)")
    A("s_cmp_ge_u32 s28, 27"); A("s_cbranch_scc1 L_cd1")
    A("s_mov_b32 s32, s20"); A("s_mov_b32 s33, s21"); A(f"s_mov_b32 s34, {1728*640*2}"); A("s_mov_b32 s35, 0x20000")
    A("s_mul_i32 s36, s28, 81920"); A("s_mul_i32 s47, s29, 160"); A("s_add_u32 s36, s36, s47")
    A("v_and_b32 v6, 1, v1"); A("v_lshlrev_b32 v6, 2, v6"); A("v_and_b32 v4, 2, v1"); A("v_add_u32 v6, v6, v4")
    A("v_mul_u32_u24 v6, 1280, v6"); A("v_lshl_add_u32 v6, v3, 4, v6")
    A("s_mov_b32 s44, 0x03ff03ff"); A("s_mov_b32 s45, 0x03ff03ff")
    A("s_mov_b64 exec, s[44:45]")
    for m in range(8):
        A(f"buffer_load_dwordx4 {D(m)}, v6, s[32:35], s36 offen {WONT}")
        A(f"buffer_load_dwordx4 {D(m+8)}, v6, s[32:35], s36 offen offset:1280 {WONT}")
        if m < 7: A("s_add_u32 s36, s36, 10240")
    A("s_mov_b64 exec, -1")
    A.label("L_cd1")
    A("s_waitcnt lgkmcnt(0)")
    eload()
    A("s_waitcnt lgkmcnt(0)")
    A("s_barrier")
    stamp(2)
    tag_setup(None, T0)
    A("s_cmp_lt_u32 s3, 3")
    A("s_cbranch_scc1 L_c")
    for t in range(4): A(f"v_mov_b32 v{ACC+t}, 0")
    A("s_cmp_ge_u32 s28, 27"); A("s_cbranch_scc1 L_fpub")
    masks()
    A("s_lshl_b32 s46, s28, 12"); A(f"s_add_u32 s46, s46, {SF}")
    A("v_lshl_add_u32 v5, v0, 4, s46")
    A("v_mov_b32 v4, v5"); A("v_mov_b32 v142, 0")
    A("s_mov_b32 s61, 0")
    lds_wait(F_B, sleep=2)
    A("s_branch L_ab2")
    A.label("L_fin")
    A("s_mov_b64 exec, -1")
    A("s_cmp_lt_u32 s28, 27")
    A("s_cbranch_scc1 L_end")
    A.label("L_c")
    A(f"s_movk_i32 s59, {-(1 << T2) & 0xffff}")
    A(f"v_mov_b32 v21, {1 << (T2 - 1)}")
    if fmap == 0:
        A("s_mov_b32 s40, s29"); A("s_sub_u32 s41, s28, 27"); A("s_lshl_b32 s41, s41, 2"); A("s_add_u32 s41, s41, s3")
    else:
        A("s_sub_u32 s41, s30, 216")
        A("s_mul_i32 s40, s41, 52"); A("s_lshr_b32 s40, s40, 8")
        A("s_mul_i32 s46, s40, 5"); A("s_sub_u32 s41, s41, s46"); A("s_lshl_b32 s41, s41, 2"); A("s_add_u32 s41, s41, s3")
    A("v_bfe_u32 v6, v0, 2, 1"); A("v_bfe_u32 v7, v0, 3, 1"); A("v_lshl_add_u32 v6, v6, 1, v7")
    A("s_mul_i32 s46, s40, 80"); A("s_lshl_b32 s48, s41, 2"); A("s_add_u32 s46, s46, s48")
    A("v_add_lshl_u32 v6, v6, s46, 1")
    A("global_load_ushort v20, v6, s[4:5]")
    A("s_mul_i32 s46, s40, 20480"); A("s_lshl_b32 s47, s41, 5"); A("s_add_u32 s46, s46, s47"); A(f"s_add_u32 s46, s46, {SY}")
    A("v_and_b32 v22, 31, v0"); A("v_mul_u32_u24 v22, 640, v22"); A("v_lshrrev_b32 v23, 5, v0"); A("v_lshl_add_u32 v22, v23, 4, v22"); A("v_add_u32 v22, s46, v22")
    lds_wait(TK_Y, sleep=4, cmp="v_cmp_gt_u32 vcc, 4,")
    stamp(1)
    if freeC is None: poll4(8, 22, SCY, 12, 13, T2, vmid=21, sleep=csleep)
    else:
        A("s_waitcnt vmcnt(0)")
        poll_free(24, 8, 22, SCY, 12, 13, T2, freeC, vmid=21)
    stamp(8)
    A("v_add_f32_dpp v8, v8, v8 row_ror:8 row_mask:0xf bank_mask:0x3")
    A("v_add_f32_dpp v10, v10, v10 row_ror:8 row_mask:0xf bank_mask:0x3")
    A("v_add_f32_dpp v8, v9, v9 row_ror:8 row_mask:0xf bank_mask:0xc")
    A("v_add_f32_dpp v10, v11, v11 row_ror:8 row_mask:0xf bank_mask:0xc")
    A("v_lshlrev_b32 v20, 16, v20")
    A("v_add_f32_dpp v8, v8, v8 row_half_mirror row_mask:0xf bank_mask:0x5")
    A("v_add_f32_dpp v8, v10, v10 row_half_mirror row_mask:0xf bank_mask:0xa")
    A(f"v_add_f32_dpp v8, v8, v8 quad_perm:[2,3,0,1] {DPPF}")
    A(f"v_add_f32_dpp v8, v8, v8 quad_perm:[1,0,3,2] {DPPF}")
    A("v_mov_b32 v9, v8")
    A("v_permlane16_swap_b32 v8, v9")
    A("v_add_f32 v8, v8, v9")
    bf16r(8, 8)
    A("v_mov_b32 v9, v8")
    A("v_permlane32_swap_b32 v8, v9")
    silu(9, 9, 10); bf16r(9, 9)
    A("v_mul_f32 v8, v8, v9"); bf16r(8, 8)
    A("v_add_f32 v8, v8, v20")
    A("v_cvt_pk_bf16_f32 v8, v8, v8")
    A("s_mov_b64 exec, 0x1111")
    A(f"global_store_short v6, v8, s[22:23] {SOUT}")
    A("s_or_b32 s46, s40, s41")
    A("s_cbranch_scc1 L_c9")
    A(f"v_mov_b32 v9, {EP}")
    A("s_mov_b64 exec, 1")
    A(f"global_store_dword v9, v{VT}, s[26:27] {SOUT}")
    A.label("L_c9")
    stamp(9)
    A.label("L_end")
    if stamps:
        A("s_memrealtime s[84:85]")
        A("s_waitcnt vmcnt(0) lgkmcnt(0)")
        A("s_setprio 0")
        A("s_add_u32 s90, s64, 2600")
        A.label("L_hold")
        A("s_sleep 16")
        A("s_memrealtime s[88:89]")
        A("s_waitcnt lgkmcnt(0)")
        A("s_sub_u32 s91, s88, s90")
        A("s_cmp_lt_i32 s91, 0")
        A("s_cbranch_scc1 L_hold")
        A("s_mul_i32 s46, s2, 12"); A("s_add_u32 s46, s46, s3"); A("s_lshl_b32 s46, s46, 6"); A("s_add_u32 s46, s46, 0x20000000")
        A("s_mov_b64 exec, -1")
        A("v_mov_b32 v4, s46")
        for k in range(11): A(f"v_mov_b32 v{8+k}, s{64+2*k}")
        A("v_mov_b32 v19, s38")
        A("s_mov_b64 exec, 1")
        for q in range(3): A(f"global_store_dwordx4 v4, v[{8+4*q}:{11+4*q}], s[26:27] offset:{16*q} nt")
    A.label("L_exit")
    A("s_endpgm")
    tail = ['.section .rodata,"a"', ".p2align 6", f".amdhsa_kernel {KN}", "  .amdhsa_next_free_vgpr 168",
            "  .amdhsa_next_free_sgpr 96", "  .amdhsa_accum_offset 168", "  .amdhsa_group_segment_fixed_size 0",
            "  .amdhsa_kernarg_size 96", "  .amdhsa_user_sgpr_count 2", "  .amdhsa_user_sgpr_kernarg_segment_ptr 1",
            "  .amdhsa_system_sgpr_workgroup_id_x 1", ".end_amdhsa_kernel"]
    return "\n".join(hdr) + "\n" + A.finish() + "\n".join(tail) + "\n"

V = {
 "base": dict(),
 "sw4": dict(swaps=[(25, 28)]),
 "sw5": dict(swaps=[(25, 28), (24, 30)]),
 "sw6": dict(swaps=[(25, 28), (26, 30)]),
 "base2": dict(),
}
if __name__ == "__main__":
    d = "code"
    open(d + "/exp/k10.s", "w").write(gen())
    for k, v in V.items():
        open(d + f"/exp/v10_{k}.s", "w").write(gen(stamps=True, **v))
        open(d + f"/exp/n10_{k}.s", "w").write(gen(stamps=False, **v))
```

```python
import sys
sys.path.insert(0, 'gen')
import gen10
s = gen10.gen(swaps=[(25, 28)])
ref = open('recurrent_scan__sliding_block_cached__swiglu_ffn__decode.s.ref').read().split("\n")
hdr = [l for l in ref if l.startswith(";") and "@launch" not in l]
lines = s.split("\n")
doc = """;
; Design (one launch, 256 workgroups = one per CU, 12 waves each; wg -> head h = wg&31 (25 and 28 exchanged), split i = wg>>5):
;   waves 4-7  (K): stream 512 keys of K into registers, scores (v_dot2 + DPP transpose-reduce), softmax stats,
;                   later the 128x80 tile of wo (diagonal-A MFMA gemv) and publish y/f partials
;   waves 8-11 (V): stream the matching V rows, P.V with diagonal-A MFMAs, publish the o partial
;   wave 0 (A): layernorm + 80-row slice of wq -> partial q, gathers the 8 partials of its head
;   wave 1 (B): same for the gate/up slice of FFN unit h (27 units of 64 columns)
;   wave 3 (D): gathers gate/up, silu*up, w_down tile -> f partial (through LDS)
;   waves 0-3 of the heads without an FFN unit finish the output columns.
;   Hand-offs between workgroups go through d_ws; every word carries a launch tag in its low bits
;   (tag = word found at a fixed d_ws offset + 1, written back at the end), stripped again by the reader.
;   Groups whose members all report the same XCC id use plain (L2) stores, otherwise device-scope stores.
""".rstrip("\n").split("\n")
out = hdr + [lines[0]] + doc + lines[1:]
open('recurrent_scan__sliding_block_cached__swiglu_ffn__decode.s', 'w').write("\n".join(out))
```
